```python
import torch

def _softmax(x, axis=-1):
    return torch.softmax(x, dim=axis)
def _gelu(x):
    return torch.nn.functional.gelu(x, approximate="tanh")
def _silu(x):
    return torch.nn.functional.silu(x)
def _sigmoid(x):
    return torch.sigmoid(x)
def _layernorm(x, axis=-1, eps=1e-5):
    m = x.mean(dim=axis, keepdim=True)
    v = x.var(dim=axis, keepdim=True, unbiased=False)
    return (x - m) / torch.sqrt(v + eps)
def _scatter_add(tgt, idx, src, axis=0):
    return tgt.clone().index_add_(axis, idx, src)
def _segment_sum(src, seg, n):
    out = torch.zeros((n,) + src.shape[1:], dtype=src.dtype)
    return out.index_add_(0, seg, src)
def _pad(x, pw):
    flat = tuple(v for pair in reversed(pw) for v in pair)
    return torch.nn.functional.pad(x, flat)

kernel_name = 'concat_heads__sliding_block__spectral_fnet__prompt'

def setup_inputs():

    _w = (lambda a: (lambda t: t.to(torch.bfloat16) if t.is_floating_point() else t)(torch.as_tensor(a)))
    def _A_setup():
        B, S, D = 1, 2048, 448
        return {
            "x": _w((lambda *s: torch.randn(*s, dtype=torch.bfloat16) * 0.2)(B, S, D)),
            "wqkv": _w((lambda *s: torch.randn(*s, dtype=torch.bfloat16) * 0.8)(D, 3 * D)),
            "wo": _w((lambda *s: torch.randn(*s, dtype=torch.bfloat16) * 0.2)(D, D)),
        }
    _A_in = _A_setup()

    def _B_setup():
        B, S, D = 1, 2048, 448
        ns = torch.arange(S)[:, None] * torch.arange(S)[None, :]
        nd = torch.arange(D)[:, None] * torch.arange(D)[None, :]
        Ws_re = torch.cos(-2.0 * torch.pi * ns / S).to(float)
        Ws_im = torch.sin(-2.0 * torch.pi * ns / S).to(float)
        Wd_re = torch.cos(-2.0 * torch.pi * nd / D).to(float)
        Wd_im = torch.sin(-2.0 * torch.pi * nd / D).to(float)
        return {
            "x": _w((lambda *s: torch.randn(*s, dtype=torch.bfloat16) * 0.05)(B, S, D)),
            "dft_seq_re": _w(Ws_re),
            "dft_seq_im": _w(Ws_im),
            "dft_hid_re": _w(Wd_re),
            "dft_hid_im": _w(Wd_im),
        }
    _B_in = _B_setup()

    return {
        "A_x": _A_in["x"],
        "A_wqkv": _A_in["wqkv"],
        "A_wo": _A_in["wo"],
        "B_x": _B_in["x"],
        "B_dft_seq_re": _B_in["dft_seq_re"],
        "B_dft_seq_im": _B_in["dft_seq_im"],
        "B_dft_hid_re": _B_in["dft_hid_re"],
        "B_dft_hid_im": _B_in["dft_hid_im"],
    }

def reference(A_x, A_wqkv, A_wo, B_x, B_dft_seq_re, B_dft_seq_im, B_dft_hid_re, B_dft_hid_im):
    def _A_ref(x, wqkv, wo):
        B, S, D = x.shape
        H = 16; Dh = D // H; W = 256
        qkv = (lambda x, *d: x.permute(*d))((x @ wqkv).reshape(B, S, 3, H, Dh), 2, 0, 3, 1, 4)
        q, k, v = qkv[0], qkv[1], qkv[2]
        scores = torch.einsum("bhqd,bhkd->bhqk", q, k) * (Dh ** -0.5)
        idx = torch.arange(S)
        mask = (idx[:, None] - idx[None, :] >= 0) & (idx[:, None] - idx[None, :] < W)
        scores = torch.where(mask[None, None], scores, -1e9)
        p = _softmax(scores, axis=-1)
        o = torch.einsum("bhqk,bhkd->bhqd", p, v)
        return (lambda x, *d: x.permute(*d))(o, 0, 2, 1, 3).reshape(B, S, D) @ wo

    def _B_ref(x, dft_seq_re, dft_seq_im, dft_hid_re, dft_hid_im):
        a = torch.einsum("bsd,ed->bse", x, dft_hid_re)
        b = torch.einsum("bsd,ed->bse", x, dft_hid_im)
        y = torch.einsum("ts,bse->bte", dft_seq_re, a) - torch.einsum("ts,bse->bte", dft_seq_im, b)
        return y

    a = _A_ref(A_x, A_wqkv, A_wo)
    b = _B_ref(B_x, B_dft_seq_re, B_dft_seq_im, B_dft_hid_re, B_dft_hid_im)
    return torch.concatenate([a, b], axis=-1)
```

```python
import re

TRANS = ("v_exp_f32", "v_log_f32", "v_rcp_f32", "v_rsq_f32", "v_sqrt_f32", "v_sin_f32", "v_cos_f32")


def regs_of(op):
    op = op.strip()
    op = re.sub(r"^-|^abs\(|\)$|^\|", "", op)
    m = re.fullmatch(r"([vsa])(\d+)", op)
    if m:
        return {(m.group(1), int(m.group(2)))}
    m = re.fullmatch(r"([vsa])\[(\d+):(\d+)\]", op)
    if m:
        return {(m.group(1), i) for i in range(int(m.group(2)), int(m.group(3)) + 1)}
    if op in ("vcc", "vcc_lo", "vcc_hi"):
        return {("vcc", 0)}
    if op in ("exec", "exec_lo", "exec_hi"):
        return {("exec", 0)}
    if op == "m0":
        return {("m0", 0)}
    return set()


class Ins:
    __slots__ = ("text", "mn", "cls", "dst", "src", "a", "b", "c", "data", "lds", "states", "wide")

    def __init__(self, text):
        self.text = text
        t = text.split(";")[0].strip()
        parts = t.split(None, 1)
        mn = parts[0]
        rest = parts[1] if len(parts) > 1 else ""
        ops = [o.strip() for o in rest.split(",")] if rest else []
        mods = []
        if ops:
            sp = ops[-1].split()
            ops[-1] = sp[0] if sp else ""
            mods = sp[1:]
        self.mn = mn
        self.dst = set(); self.src = set(); self.a = set(); self.b = set(); self.c = set(); self.data = set()
        self.lds = False; self.states = 1; self.wide = False
        R = regs_of
        if mn == "s_nop":
            self.cls = "nop"; self.states = int(ops[0], 0) + 1
        elif mn.startswith("v_mfma"):
            self.cls = "mfma"
            self.dst = R(ops[0]); self.a = R(ops[1]); self.b = R(ops[2]); self.c = R(ops[3])
            self.src = self.a | self.b | self.c
        elif mn.startswith("v_"):
            self.cls = "valu"
            if mn.startswith("v_permlane") and "swap" in mn:
                self.dst = R(ops[0]) | R(ops[1]); self.src = set(self.dst)
            elif mn.startswith("v_cmp"):
                self.dst = R(ops[0])
                for o in ops[1:]: self.src |= R(o)
            elif "_co_" in mn:
                self.dst = R(ops[0]) | R(ops[1])
                for o in ops[2:]: self.src |= R(o)
            else:
                self.dst = R(ops[0])
                for o in ops[1:]: self.src |= R(o)
                if mn.startswith(("v_fmac", "v_writelane")): self.src |= self.dst
        elif mn.startswith("ds_"):
            self.cls = "ds"
            if mn.startswith(("ds_read", "ds_bpermute", "ds_permute", "ds_swizzle")):
                self.dst = R(ops[0])
                for o in ops[1:]: self.src |= R(o)
            else:
                for o in ops: self.src |= R(o)
        elif mn.startswith(("buffer_", "global_")):
            self.cls = "vmem"
            self.lds = "lds" in mods
            if mn.startswith("buffer_load") and not self.lds:
                self.dst = R(ops[0])
                for o in ops[1:]: self.src |= R(o)
            else:
                for o in ops: self.src |= R(o)
                if "store" in mn or "atomic" in mn:
                    self.data = R(ops[0])
                    self.wide = mn.endswith(("x3", "x4"))
        elif mn.startswith("s_"):
            self.cls = "salu"
            if mn.startswith(("s_cmp", "s_cbranch", "s_branch", "s_waitcnt", "s_barrier", "s_endpgm", "s_sleep", "s_setprio", "s_bitcmp")):
                for o in ops: self.src |= R(o)
            else:
                self.dst = R(ops[0]) if ops else set()
                for o in ops[1:]: self.src |= R(o)
                if "saveexec" in mn: self.dst |= {("exec", 0)}
        else:
            raise ValueError("unknown instr " + text)


def need(p, c):
    n = 0
    vd = {r for r in p.dst if r[0] in "va"}
    sd = {r for r in p.dst if r[0] in ("s", "vcc")}
    if p.cls == "valu":
        if c.cls == "mfma" and vd & c.src: n = max(n, 2)
        if c.cls == "valu":
            if p.mn.startswith(TRANS) and not c.mn.startswith(TRANS) and vd & c.src: n = max(n, 1)
            if c.mn.startswith(("v_readlane", "v_readfirstlane")) and vd & c.src: n = max(n, 1)
            if c.mn.startswith("v_permlane") and vd & c.src: n = max(n, 2)
            if "dpp" in c.text or "row_" in c.text:
                if vd & c.src: n = max(n, 2)
            if sd & c.src: n = max(n, 4 if c.mn.startswith(("v_readlane", "v_writelane")) else 2)
        if c.cls == "vmem" and sd & c.src: n = max(n, 5)
        if c.cls == "salu" and (sd & c.src or (c.mn.startswith("s_cbranch_vcc") and ("vcc", 0) in sd)): n = max(n, 2)
    elif p.cls == "mfma":
        passes = 8 if "32x32" in p.mn else 4
        big = {4: 8, 8: 12}[passes]; ov = {4: 6, 8: 10}[passes]; war = {4: 3, 8: 7}[passes]
        if c.cls == "mfma":
            if p.dst & (c.a | c.b): n = max(n, big)
            if p.dst & c.c and not (p.dst == c.c and p.mn == c.mn): n = max(n, ov)
            if p.dst & c.dst and not (p.dst == c.c): n = max(n, ov)
        elif c.cls in ("valu", "ds", "vmem"):
            if p.dst & (c.src | c.dst): n = max(n, big)
            if c.cls == "valu" and p.c & c.dst: n = max(n, war)
    elif p.cls == "salu":
        if ("m0", 0) in p.dst and c.cls == "vmem" and c.lds: n = max(n, 1)
        if ("m0", 0) in p.dst and c.cls == "valu" and ("m0", 0) in c.src: n = max(n, 1)
    elif p.cls == "vmem":
        if p.wide and p.data & c.dst: n = max(n, 2 if c.cls in ("valu", "mfma") else 1)
    return n


class Asm:
    def __init__(self):
        self.items = []
        self.nlab = 0

    def I(self, *texts):
        for text in texts:
            for t in text.split("\n"):
                t = t.strip()
                if t:
                    self.items.append(("i", Ins(t)))

    def L(self, label):
        self.items.append(("l", label))

    def D(self, text):
        self.items.append(("d", text))

    def C(self, text):
        self.items.append(("d", "; " + text))

    def newlabel(self, stem="L"):
        self.nlab += 1
        return f"{stem}_{self.nlab}"

    def render(self):
        out = []
        hist = []
        pend = {}
        W = 14
        nins = 0
        for kind, x in self.items:
            if kind == "d":
                out.append(x); continue
            if kind == "l":
                for h in pend.pop(x, []):
                    hist = hist + h
                out.append(x + ":"); continue
            req = 0
            for p, age in hist:
                k = need(p, x) - age
                if k > req: req = k
            if req > 0:
                out.append(f"  s_nop {req-1}")
                nins += 1
                hist = [(p, a + req) for p, a in hist]
            out.append("  " + x.text)
            hist = [(p, a + x.states) for p, a in hist if a + x.states < W]
            if x.cls != "nop":
                hist.append((x, 0))
            if x.mn.startswith(("s_cbranch", "s_branch")):
                tgt = x.text.split()[1]
                pend.setdefault(tgt, []).append(list(hist))
                if x.mn == "s_branch":
                    hist = []
            if x.mn == "s_endpgm":
                hist = []
        self.auto_nops = nins
        return "\n".join(out) + "\n"
```

```python
import sys, math, argparse, struct
sys.path.insert(0, "work")
from asmlib import Asm

NAME = "concat_heads__sliding_block__spectral_fnet__prompt"
SLOT = 32768
NSLOT = 5
MF = "v_mfma_f32_16x16x32_bf16"

AB_WS = 0
QKV_WS = 4 << 20
O_WS = 10 << 20
PART_WS = 12 << 20
FLAG_WS = 20 << 20
STAMP_WS = 24 << 20
F_AB, F_QKV, F_O, F_PART = 0, 1, 2, 3

S_PTR = 4
S_OUT, S_DBG, S_WS = 20, 22, 24
R_XA, R_WQKV, R_WO, R_XB, R_WS_, R_WD, R_WK, R_OUT, R_DBG = 28, 32, 36, 40, 44, 48, 52, 56, 60
S_WAVE, S_X, S_Y, S_LW = 64, 65, 66, 67
S_NONCE = 68
S_T0, S_T1, S_T2, S_T3 = 70, 71, 72, 73
S_M = 74
S_P = 76
S_SPIN = 69


def srd(r):
    return f"s[{r}:{r+3}]"


def vq(r, n=4):
    return f"v[{r}:{r+n-1}]"


def f32bits(x):
    return struct.unpack("<I", struct.pack("<f", x))[0]


class Group:
    def __init__(self, rsrc, voffs, sbase, sconst, ldsoff, wstride, flags="", half_last=False, dep=None):
        self.rsrc, self.voffs, self.sbase, self.sconst = rsrc, voffs, sbase, sconst
        self.ldsoff, self.wstride, self.flags, self.half_last, self.dep = ldsoff, wstride, flags, half_last, dep
        self.issue_at = None


class Stage:
    def __init__(self, phase, j, groups):
        self.phase, self.j, self.groups = phase, j, groups


VL = {}
_n = 200
for nm, cnt in (("abA", 2), ("abB", 4), ("qkvA", 4), ("qkvB", 3), ("bigA", 4), ("lin3584", 1), ("lin2k", 1), ("lin16k", 1), ("woA", 4)):
    VL[nm] = list(range(_n, _n + cnt)); _n += cnt
SL = {k: S_P + i for i, k in enumerate(["abA", "abB", "qkvA", "qkvB", "bigA", "bigB", "k0", "k1", "k2", "q", "woA", "woB",
                                        "w2048", "w3072", "w3584", "w4096"])}
KV_DELTA = 16 * 128 * 1024


class Kernel:
    def __init__(self, name, phases, opt):
        self.name, self.phases, self.opt = name, phases, opt
        self.a = Asm()
        self.stages = []
        self.first = {}
        for ph in phases:
            self.first[ph] = len(self.stages)
            self.stages += self.mk_stages(ph)
        self.N = len(self.stages)
        self.pre = {}
        self.post = {}
        self.has = lambda p: p in phases

    def mk_stages(self, ph):
        o = self.opt
        sc = "sc1"
        if ph == "ab":
            return [Stage(ph, j, [Group(R_XB, VL["abA"], SL["abA"], 128 * j, 0, 2048),
                                  Group(R_WD, VL["abB"], SL["abB"], 128 * j, 8192, 3584, half_last=True)]) for j in range(7)]
        if ph == "qkv":
            return [Stage(ph, j, [Group(R_XA, VL["qkvA"], SL["qkvA"], 128 * j, 0, 4096),
                                  Group(R_WQKV, VL["qkvB"], SL["qkvB"], 64 * 2688 * j, 16384, 3072)]) for j in range(7)]
        if ph in ("big1", "big2"):
            rng = range(0, o.n1) if ph == "big1" else range(o.n1, 16)
            return [Stage(ph, j, [Group(R_WS_, VL["bigA"], SL["bigA"], 128 * j, 0, 4096),
                                  Group(R_WK, VL["lin3584"] * 4, SL["bigB"], 14336 * j, 16384, 3584, sc, half_last=True, dep="ab")]) for j in rng]
        if ph == "attn":
            k = [Group(R_WK, VL["lin2k"] * 2, SL[f"k{g}"], 0, 8192 * g, 2048, sc, dep="qkv") for g in range(3)]
            k.append(Group(R_WK, VL["lin2k"] * 2, SL["q"], 0, 24576, 2048, sc, dep="qkv"))
            v = [Group(R_WK, VL["lin2k"] * 2, SL[f"k{g}"], KV_DELTA, 8192 * g, 2048, sc, dep="qkv") for g in range(3)]
            return [Stage(ph, 0, k), Stage(ph, 1, v)]
        if ph == "wo":
            return [Stage(ph, j, [Group(R_WO, VL["woA"], SL["woA"], 112 * 896 * j, 0, 3584, half_last=True),
                                  Group(R_WK, VL["lin16k"] * 4, SL["woB"], 4096 * j, 16384, 4096, sc, dep="attn")]) for j in range(4)]
        if ph == "reduce":
            return []
        raise ValueError(ph)

    def hook(self, table, role, b, fn):
        table.setdefault((role, b), []).append(fn)

    def barrier(self, role, b):
        for fn in self.pre.get((role, b), []): fn()
        self.a.I("s_barrier")
        for fn in self.post.get((role, b), []): fn()

    def prologue(self):
        a = self.a
        a.D(f".globl {self.name}\n.p2align 8\n.type {self.name},@function")
        a.L(self.name)
        self.end = a.newlabel("L_end")
        a.I(f"s_cmp_ge_u32 s2, 256", f"s_cbranch_scc1 {self.end}")
        a.I(f"s_load_dwordx16 s[{S_PTR}:{S_PTR+15}], s[0:1], 0")
        a.I(f"s_load_dwordx4 s[{S_OUT}:{S_OUT+3}], s[0:1], 64")
        a.I(f"s_load_dwordx2 s[{S_WS}:{S_WS+1}], s[0:1], 80")
        if self.opt.stamps:
            a.I("s_memrealtime s[96:97]")
        a.I("v_lshrrev_b32 v4, 6, v0", "v_and_b32 v1, 63, v0")
        a.I(f"v_readfirstlane_b32 s{S_WAVE}, v4")
        a.I("v_lshrrev_b32 v2, 4, v1", "v_and_b32 v3, 15, v1")
        a.I(f"s_and_b32 s{S_X}, s2, 7", f"s_lshr_b32 s{S_Y}, s2, 3")
        a.I(f"s_and_b32 s{S_LW}, s{S_WAVE}, 3")
        a.I("v_mov_b32 v37, 0", "v_mov_b32 v39, 0")

    def mk_srd(self, r, lo, nbytes, sel=None):
        a = self.a
        if sel is None:
            a.I(f"s_mov_b32 s{r}, s{lo}", f"s_and_b32 s{r+1}, s{lo+1}, 0xffff")
        else:
            a.I(f"s_cselect_b32 s{r}, s{sel}, s{lo}", f"s_cselect_b32 s{r+1}, s{sel+1}, s{lo+1}", f"s_and_b32 s{r+1}, s{r+1}, 0xffff")
        a.I(f"s_mov_b32 s{r+2}, {nbytes}", f"s_mov_b32 s{r+3}, 0x20000")

    def srds(self):
        a = self.a
        a.I("s_waitcnt lgkmcnt(0)")
        P = S_PTR
        self.mk_srd(R_XB, P + 6, 2048 * 896)
        a.I(f"s_cmp_ge_u32 s{S_Y}, 16")
        self.mk_srd(R_WD, P + 12, 448 * 896, sel=P + 14)
        self.mk_srd(R_XA, P + 0, 2048 * 896)
        self.mk_srd(R_WQKV, P + 2, 448 * 2688)
        self.mk_srd(R_WO, P + 4, 448 * 896)
        a.I(f"s_cmp_ge_u32 s{S_X}, 4")
        self.mk_srd(R_WS_, P + 8, 2048 * 4096, sel=P + 10)
        self.mk_srd(R_WK, S_WS, 0x10000000)
        self.mk_srd(R_OUT, S_OUT, 2048 * 1792)
        self.mk_srd(R_DBG, S_DBG, 256)

    def ids_big(self, mi, ni, ks):
        a = self.a
        a.I(f"s_lshr_b32 s{ks}, s{S_X}, 1")
        a.I(f"s_and_b32 s{mi}, s{S_X}, 1", f"s_lshl_b32 s{mi}, s{mi}, 3", f"s_lshr_b32 s{ni}, s{S_Y}, 2", f"s_add_u32 s{mi}, s{mi}, s{ni}")
        a.I(f"s_and_b32 s{ni}, s{S_Y}, 3")

    def loader_setup(self, ph):
        a = self.a
        T0, T1, T2, T3 = S_T0, S_T1, S_T2, S_T3
        LW = S_LW
        if ph == "common":
            a.I("v_lshrrev_b32 v5, 3, v1", "v_and_b32 v6, 7, v1", "v_lshlrev_b32 v7, 4, v1")
            a.I("v_xor_b32 v8, v5, v6", "v_lshlrev_b32 v8, 4, v8")
            for st in (2048, 3072, 3584, 4096):
                a.I(f"s_mul_i32 s{SL[f'w{st}']}, s{LW}, {st}")
            return
        if ph == "ab":
            r = VL["abA"]
            a.I("v_lshrrev_b32 v9, 2, v5", "v_lshlrev_b32 v9, 3, v9", "v_and_b32 v10, 3, v5", "v_add_u32 v9, v9, v10")
            a.I(f"s_lshr_b32 s{T0}, s{LW}, 1", f"s_lshl_b32 s{T0}, s{T0}, 5", f"s_and_b32 s{T1}, s{LW}, 1", f"s_lshl_b32 s{T1}, s{T1}, 2", f"s_add_u32 s{T0}, s{T0}, s{T1}")
            a.I(f"v_add_u32 v9, s{T0}, v9", f"v_mul_u32_u24 v9, 896, v9", f"v_add_u32 v{r[0]}, v9, v8")
            a.I(f"v_add_u32 v{r[1]}, {16*896-1024}, v{r[0]}")
            a.I(f"s_mul_i32 s{T0}, s{LW}, 28")
            for jj, reg in enumerate(VL["abB"]):
                a.I(f"s_add_u32 s{T1}, s{T0}, {8*jj}")
                a.I(f"v_add_u32 v9, s{T1}, v5")
                a.I("v_lshrrev_b32 v10, 5, v9", "v_lshlrev_b32 v10, 5, v10")
                a.I("v_bfe_u32 v11, v9, 2, 2", "v_lshl_add_u32 v10, v11, 3, v10")
                a.I("v_bfe_u32 v11, v9, 4, 1", "v_lshl_add_u32 v10, v11, 2, v10")
                a.I("v_and_b32 v11, 3, v9", "v_add_u32 v10, v10, v11")
                a.I("v_cmp_le_u32 vcc, 96, v9", "v_cndmask_b32 v10, v10, v9, vcc")
                a.I("v_mul_u32_u24 v10, 896, v10")
                a.I("v_and_b32 v11, 7, v9", "v_xor_b32 v11, v11, v6", f"v_lshl_add_u32 v10, v11, 4, v10")
                a.I(f"v_subrev_u32 v{reg}, {1024*jj}, v10")
            a.I(f"s_and_b32 s{T0}, s{S_Y}, 3", f"s_lshl_b32 s{T1}, s{S_X}, 2", f"s_add_u32 s{T0}, s{T0}, s{T1}", f"s_mul_i32 s{SL['abA']}, s{T0}, {64*896}")
            a.I(f"s_bfe_u32 s{T0}, s{S_Y}, 0x20002", f"s_mul_i32 s{SL['abB']}, s{T0}, {112*896}")
        elif ph == "qkv":
            r = VL["qkvA"]
            a.I(f"s_lshl_b32 s{T0}, s{LW}, 5", f"v_add_u32 v9, s{T0}, v5", "v_mul_u32_u24 v9, 896, v9", f"v_add_u32 v{r[0]}, v9, v8")
            for jj in range(1, 4):
                a.I(f"v_add_u32 v{r[jj]}, {jj*(8*896-1024)}, v{r[0]}")
            a.I(f"s_lshl_b32 s{T0}, s{LW}, 4")
            for jj, reg in enumerate(VL["qkvB"]):
                a.I(f"v_add_u32 v9, {64*jj}, v1")
                a.I("v_mul_u32_u24 v10, 0x5556, v9", "v_lshrrev_b32 v10, 18, v10")
                a.I("v_mul_u32_u24 v11, 12, v10", "v_sub_u32 v11, v9, v11")
                a.I("v_and_b32 v12, 8, v10")
                a.I(f"v_add_u32 v10, s{T0}, v10", "v_mul_u32_u24 v10, 2688, v10")
                a.I("v_lshl_add_u32 v10, v11, 4, v10", "v_sub_u32 v10, v10, v12")
                a.I(f"v_subrev_u32 v{reg}, {1024*jj}, v10")
            a.I(f"s_and_b32 s{T0}, s{S_Y}, 1", f"s_lshl_b32 s{T1}, s{S_X}, 1", f"s_add_u32 s{T0}, s{T0}, s{T1}", f"s_mul_i32 s{SL['qkvA']}, s{T0}, {128*896}")
            a.I(f"s_lshr_b32 s{T0}, s{S_Y}, 1", f"s_mul_i32 s{SL['qkvB']}, s{T0}, 168")
        elif ph == "big":
            r = VL["bigA"]
            a.I(f"s_lshl_b32 s{T0}, s{LW}, 5", f"v_add_u32 v9, s{T0}, v5", "v_lshlrev_b32 v9, 12, v9", f"v_add_u32 v{r[0]}, v9, v8")
            for jj in range(1, 4):
                a.I(f"v_add_u32 v{r[jj]}, {jj*(8*4096-1024)}, v{r[0]}")
            a.I(f"v_add_u32 v{VL['lin3584'][0]}, s{SL['w3584']}, v7")
            self.ids_big(T0, T1, T2)
            a.I(f"s_lshl_b32 s{SL['bigA']}, s{T0}, 19")
            a.I(f"s_and_b32 s{T3}, s{T2}, 1", f"s_lshl_b32 s{T0}, s{T3}, 11", f"s_add_u32 s{SL['bigA']}, s{SL['bigA']}, s{T0}")
            a.I(f"s_lshr_b32 s{T0}, s{T2}, 1", f"s_lshl_b32 s{T0}, s{T0}, 2", f"s_add_u32 s{T0}, s{T0}, s{T1}", f"s_lshl_b32 s{T0}, s{T0}, 5")
            a.I(f"s_lshl_b32 s{T3}, s{T3}, 4", f"s_add_u32 s{T0}, s{T0}, s{T3}", f"s_mul_i32 s{SL['bigB']}, s{T0}, 14336")
            if AB_WS: a.I(f"s_add_u32 s{SL['bigB']}, s{SL['bigB']}, {AB_WS}")
        elif ph == "attn":
            a.I(f"v_add_u32 v{VL['lin2k'][0]}, s{SL['w2048']}, v7")
            a.I(f"s_and_b32 s{T0}, s{S_Y}, 1", f"s_lshl_b32 s{T1}, s{S_X}, 1", f"s_add_u32 s{T0}, s{T0}, s{T1}", f"s_lshl_b32 s{T0}, s{T0}, 17")
            a.I(f"s_add_u32 s{T0}, s{T0}, {QKV_WS}")
            a.I(f"s_lshr_b32 s{T1}, s{S_Y}, 1")
            a.I(f"s_lshl_b32 s{T2}, s{T1}, 13", f"s_add_u32 s{SL['q']}, s{T0}, s{T2}")
            a.I(f"s_add_u32 s{T0}, s{T0}, {KV_DELTA}")
            for g in range(3):
                a.I(f"s_add_i32 s{T2}, s{T1}, {g-2}", f"s_max_i32 s{T2}, s{T2}, 0", f"s_lshl_b32 s{T2}, s{T2}, 13", f"s_add_u32 s{SL[f'k{g}']}, s{T0}, s{T2}")
        elif ph == "wo":
            r = VL["woA"]
            a.I(f"s_mul_i32 s{T0}, s{LW}, 28", f"v_add_u32 v9, s{T0}, v5", "v_mul_u32_u24 v9, 896, v9")
            a.I("v_and_b32 v10, 2, v5", "v_lshlrev_b32 v10, 1, v10", "v_xor_b32 v10, v10, v6", f"v_lshl_add_u32 v{r[0]}, v10, 4, v9")
            for jj in range(1, 4):
                a.I(f"v_add_u32 v{r[jj]}, {jj*(8*896-1024)}, v{r[0]}")
            a.I(f"s_lshl_b32 s{T0}, s{LW}, 14", f"v_add_u32 v{VL['lin16k'][0]}, s{T0}, v7")
            a.I(f"s_lshr_b32 s{T0}, s{S_Y}, 2", f"s_min_u32 s{T0}, s{T0}, 6", f"s_lshl_b32 s{SL['woA']}, s{T0}, 7")
            a.I(f"s_and_b32 s{T0}, s{S_Y}, 3", f"s_lshl_b32 s{T1}, s{S_X}, 2", f"s_add_u32 s{T0}, s{T0}, s{T1}", f"s_lshl_b32 s{T0}, s{T0}, 16")
            a.I(f"s_add_u32 s{SL['woB']}, s{T0}, {O_WS}")

    def issue_group(self, s, g):
        a = self.a
        base = (s % NSLOT) * SLOT + g.ldsoff
        a.I(f"s_add_u32 m0, s{SL[f'w{g.wstride}']}, {base}")
        if g.sconst:
            a.I(f"s_add_u32 s{S_T0}, s{g.sbase}, {g.sconst}")
            so = S_T0
        else:
            so = g.sbase
        n = len(g.voffs)
        for jj, v in enumerate(g.voffs):
            if g.half_last and jj == n - 1:
                a.I("s_mov_b32 exec_hi, 0")
            off = f" offset:{1024*jj}" if jj else ""
            fl = f" {g.flags}" if g.flags else ""
            a.I(f"buffer_load_dwordx4 v{v}, {srd(g.rsrc)}, s{so} offen{off}{fl} lds")
            self.fifo.append(("ld", s))
        if g.half_last:
            a.I("s_mov_b32 exec_hi, -1")

    def wait_fifo(self, pred):
        last = -1
        for i, e in enumerate(self.fifo):
            if pred(e): last = i
        if last < 0: return
        n = len(self.fifo) - 1 - last
        assert n <= 63
        self.a.I(f"s_waitcnt vmcnt({n})")
        self.fifo = self.fifo[last + 1:]

    def loader(self):
        a = self.a
        self.fifo = []
        N = self.N
        sched = {}
        for s, st in enumerate(self.stages):
            for g in st.groups:
                at = s - (NSLOT - 1) if s >= NSLOT else -1
                if g.issue_at is not None: at = max(at, g.issue_at)
                assert at < s, (st.phase, st.j, at, s)
                sched.setdefault(at, []).append((s, g))
        done = set()

        def setup_for(ph):
            key = "big" if ph.startswith("big") else ph
            if key not in done:
                done.add(key); self.loader_setup(key)
        self.loader_setup("common")
        if self.stages: setup_for(self.stages[0].phase)
        self.srds()
        for s, g in sched.get(-1, []):
            setup_for(self.stages[s].phase)
            self.issue_group(s, g)
        for ph in self.phases:
            if ph != "reduce": setup_for(ph)
        b = 0
        while b < N:
            self.wait_fifo(lambda e: e[0] == "ld" and e[1] <= b)
            self.barrier("L", b)
            for s, g in sched.get(b, []): self.issue_group(s, g)
            if self.stages[b].phase == "attn" and self.stages[b].j == 0:
                self.attn_loader_cb = lambda bb: self._attn_loader_bar(bb, sched)
                self.attention(b, role="L")
                b += 3 if b + 2 < N else 2
                continue
            b += 1
        if self.has("reduce"):
            self.reduce()
        self.stamp(15, wave=4)
        a.I(f"s_branch {self.end}")

    def _attn_loader_bar(self, bb, sched):
        self.wait_fifo(lambda e: e[0] == "ld" and e[1] <= bb)
        self.barrier("L", bb)
        for s, g in sched.get(bb, []): self.issue_group(s, g)

    def stamp(self, idx, wave):
        if not self.opt.stamps: return
        a = self.a
        sk = a.newlabel("L_st")
        a.I(f"s_cmp_eq_u32 s{S_WAVE}, {wave}", f"s_cbranch_scc0 {sk}")
        a.I("s_memrealtime s[98:99]", "s_waitcnt lgkmcnt(0)")
        a.I(f"s_lshl_b32 s100, s2, 7", f"s_add_u32 s100, s100, {STAMP_WS + self.opt.kidx * 65536 + idx * 8}")
        a.I("v_mov_b32 v198, s98", "v_mov_b32 v199, s96", "v_mov_b32 v197, 0")
        a.I("s_mov_b64 exec, 1")
        a.I(f"buffer_store_dwordx2 v[198:199], v197, {srd(R_WK)}, s100 offen")
        a.I("s_mov_b64 exec, -1")
        if wave >= 4: raise_ = True
        a.L(sk)

    def windows(self, base_reg, first, stages):
        wins = sorted({(s % NSLOT) // 2 for s in stages})
        out = {}
        for k, w in enumerate(wins):
            r = first + k
            if w == 0: self.a.I(f"v_mov_b32 v{r}, v{base_reg}")
            else: self.a.I(f"v_add_u32 v{r}, {65536*w}, v{base_reg}")
            out[w] = r
        return out

    @staticmethod
    def ad(wins, s, off):
        sl = s % NSLOT
        o = (sl % 2) * SLOT + off
        assert o < 65536
        return f"v{wins[sl // 2]} offset:{o}"

    def rm_base(self, d0, d1):
        a = self.a
        a.I("v_and_b32 v4, 7, v3", "v_xor_b32 v4, v4, v2", "v_lshlrev_b32 v4, 4, v4", f"v_lshl_add_u32 v{d0}, v3, 7, v4", f"v_xor_b32 v{d1}, 64, v{d0}")

    def gemm(self, stages, ksteps, reads, mfmas, first_c_zero=True):
        a = self.a
        seq = [(s, u) for s in stages for u in range(ksteps)]
        for r in reads(seq[0][0], seq[0][1], 0): a.I(r)
        for n, (s, u) in enumerate(seq):
            a.I("s_waitcnt lgkmcnt(0)")
            if u == ksteps - 1 and s + 1 < self.N:
                self.barrier("C", s + 1)
            rd = reads(seq[n + 1][0], seq[n + 1][1], (n + 1) % 2) if n + 1 < len(seq) else []
            mf = mfmas(n % 2, first_c_zero and n == 0, u)
            per = max(1, -(-len(rd) // max(1, len(mf) - 1)))
            k = 0
            for m in mf:
                a.I(m)
                for _ in range(per):
                    if k < len(rd):
                        a.I(rd[k]); k += 1
            assert k == len(rd)

    def pack(self, q, x, y):
        a = self.a
        a.I(f"v_cvt_pk_bf16_f32 v{q}, v{x}, v{x+1}", f"v_cvt_pk_bf16_f32 v{q+1}, v{x+2}, v{x+3}")
        a.I(f"v_cvt_pk_bf16_f32 v{q+2}, v{y}, v{y+1}", f"v_cvt_pk_bf16_f32 v{q+3}, v{y+2}, v{y+3}")

    def st_flags(self, ph_consumers):
        return " sc1"

    def c_ab(self):
        a = self.a
        st = list(range(self.first["ab"], self.first["ab"] + 7))
        T0, T1, T2 = S_T0, S_T1, S_T2
        self.rm_base(8, 9)
        a.I(f"s_and_b32 s{T0}, s{S_WAVE}, 1", f"s_lshl_b32 s{T0}, s{T0}, 12")
        a.I(f"v_add_u32 v6, s{T0}, v8", f"v_add_u32 v7, s{T0}, v9")
        wa = [self.windows(6, 10, st), self.windows(7, 13, st)]
        wb = [self.windows(8, 16, st), self.windows(9, 32, st)]
        a.I("v_lshlrev_b32 v5, 4, v1")
        SB, SG = S_P, S_P + 1
        a.I(f"s_lshr_b32 s{T0}, s{S_Y}, 2", f"s_lshl_b32 s{T0}, s{T0}, 5", f"s_lshl_b32 s{T1}, s{S_X}, 2", f"s_add_u32 s{T0}, s{T0}, s{T1}")
        a.I(f"s_and_b32 s{T1}, s{S_Y}, 3", f"s_add_u32 s{T0}, s{T0}, s{T1}", f"s_mul_i32 s{SB}, s{T0}, 14336")
        a.I(f"s_and_b32 s{T0}, s{S_WAVE}, 1", f"s_mul_i32 s{T0}, s{T0}, 7168", f"s_add_u32 s{SB}, s{SB}, s{T0}")
        a.I(f"s_lshr_b32 s{T0}, s{S_WAVE}, 1", f"s_lshl_b32 s{T0}, s{T0}, 12", f"s_add_u32 s{SB}, s{SB}, s{T0}")
        if AB_WS: a.I(f"s_add_u32 s{SB}, s{SB}, {AB_WS}")
        a.I(f"s_cmp_ge_u32 s{S_Y}, 16", f"s_cselect_b32 s{SG}, 0x80008000, 0")
        if st[0] == 0: self.barrier("C", 0)
        l1, lj = a.newlabel("L_ab1"), a.newlabel("L_abj")
        a.I(f"s_cmp_ge_u32 s{S_WAVE}, 2", f"s_cbranch_scc1 {l1}")
        for eh in range(2):
            nf = 4 - eh
            FA = lambda t, m: 40 + 24 * t + 4 * m
            FB = lambda t, f: 48 + 24 * t + 4 * f
            AC = lambda m, f: 112 + 16 * m + 4 * f

            def reads(s, u, t):
                r = [f"ds_read_b128 {vq(FA(t, m))}, {self.ad(wa[u], s, 2048*m)}" for m in range(2)]
                r += [f"ds_read_b128 {vq(FB(t, f))}, {self.ad(wb[u], s, 8192 + 2048*(4*eh+f))}" for f in range(nf)]
                return r

            def mfmas(t, z, u):
                return [f"{MF} {vq(AC(m, f))}, {vq(FA(t, m))}, {vq(FB(t, f))}, {'0' if z else vq(AC(m, f))}" for f in range(nf) for m in range(2)]
            self.gemm(st, 2, reads, mfmas)
            for f in range(nf):
                q = AC(0, f)
                self.pack(q, q, AC(1, f))
                for d in range(4): a.I(f"v_xor_b32 v{q+d}, s{SG}, v{q+d}")
                a.I(f"buffer_store_dwordx4 {vq(q)}, v5, {srd(R_WK)}, s{SB} offen offset:{1024*f} sc1")
            if eh == 0:
                a.I(f"s_branch {lj}")
                a.L(l1)
        a.L(lj)

    def pos16(self, d):
        a = self.a
        a.I("v_and_b32 v4, 1, v2", "v_mul_u32_u24 v4, 12, v4", "v_xor_b32 v4, v4, v1", f"v_lshlrev_b32 v{d}, 4, v4")

    def c_qkv(self):
        a = self.a
        st = list(range(self.first["qkv"], self.first["qkv"] + 7))
        T0, T1, T2 = S_T0, S_T1, S_T2
        self.rm_base(8, 9)
        a.I(f"s_lshl_b32 s{T0}, s{S_WAVE}, 12")
        a.I(f"v_add_u32 v8, s{T0}, v8", f"v_add_u32 v9, s{T0}, v9")
        wa = [self.windows(8, 10, st), self.windows(9, 13, st)]
        a.I("v_lshrrev_b32 v4, 2, v3", "v_lshl_add_u32 v4, v2, 3, v4", "v_mul_u32_u24 v4, 192, v4")
        a.I("v_and_b32 v6, 1, v2", "v_lshl_add_u32 v4, v6, 3, v4", "v_and_b32 v6, 3, v3", "v_lshl_add_u32 v6, v6, 4, v4")
        wb = self.windows(6, 16, st)
        self.pos16(5)
        a.I(f"v_cmp_eq_u32 s[{S_M}:{S_M+1}], 3, v2")
        SB, SH = S_P, S_P + 3
        a.I(f"s_lshr_b32 s{T0}, s{S_Y}, 1", f"s_mul_i32 s{SH}, s{T0}, 3", f"s_lshl_b32 s{T0}, s{SH}, 7")
        a.I(f"s_and_b32 s{T1}, s{S_Y}, 1", f"s_lshl_b32 s{T2}, s{S_X}, 1", f"s_add_u32 s{T1}, s{T1}, s{T2}", f"s_lshl_b32 s{T1}, s{T1}, 3", f"s_add_u32 s{T0}, s{T0}, s{T1}")
        a.I(f"s_lshl_b32 s{T1}, s{S_WAVE}, 1", f"s_add_u32 s{T0}, s{T0}, s{T1}", f"s_lshl_b32 s{T0}, s{T0}, 10", f"s_add_u32 s{SB}, s{T0}, {QKV_WS}")
        a.I(f"s_add_u32 s{SB+1}, s{SB}, 0x20000", f"s_add_u32 s{SB+2}, s{SB}, 0x40000")
        for hl in range(3):
            a.I(f"s_cmp_ge_u32 s{SH}, {32-hl}", f"s_cselect_b32 s{T0}, 0x3f80, 0", f"v_mov_b32 v{32+hl}, s{T0}")
        a.I("v_mov_b32 v35, 0")
        if st[0] == 0: self.barrier("C", 0)
        FX = lambda t, m: 40 + 32 * t + 4 * m
        FW = lambda t, hl, f: 48 + 32 * t + 8 * hl + 4 * f
        AC = lambda hl, f, m: 112 + 16 * hl + 8 * m + 4 * f

        def reads(s, u, t):
            r = [f"ds_read_b128 {vq(FX(t, m))}, {self.ad(wa[u], s, 2048*m)}" for m in range(2)]
            for hl in range(3):
                for f in range(2):
                    for h2 in range(2):
                        r.append(f"ds_read_b64_tr_b16 {vq(FW(t, hl, f) + 2*h2, 2)}, {self.ad(wb, s, 16384 + 56*hl + 8*f + 768*h2 + 6144*u)}")
            return r

        def mfmas(t, z, u):
            return [f"{MF} {vq(AC(hl, f, m))}, {vq(FW(t, hl, f))}, {vq(FX(t, m))}, {'0' if z else vq(AC(hl, f, m))}"
                    for hl in range(3) for f in range(2) for m in range(2)]
        self.gemm(st, 2, reads, mfmas)
        for hl in range(3):
            for m in range(2):
                q = AC(hl, 0, m)
                self.pack(q, q, AC(hl, 1, m))
                a.I(f"v_cndmask_b32 v{q+2}, v{q+2}, v{32+hl}, s[{S_M}:{S_M+1}]", f"v_cndmask_b32 v{q+3}, v{q+3}, v35, s[{S_M}:{S_M+1}]")
                a.I(f"buffer_store_dwordx4 {vq(q)}, v5, {srd(R_WK)}, s{SB+hl} offen offset:{1024*m} sc1")

    def c_big(self, ph):
        a = self.a
        n = len(self.mk_stages(ph))
        st = list(range(self.first[ph], self.first[ph] + n))
        T0, T1, T2, T3 = S_T0, S_T1, S_T2, S_T3
        if ph == "big1":
            allst = list(range(NSLOT))
            self.rm_base(8, 9)
            a.I(f"s_lshl_b32 s{T0}, s{S_WAVE}, 12")
            a.I(f"v_add_u32 v8, s{T0}, v8", f"v_add_u32 v9, s{T0}, v9", "v_lshlrev_b32 v7, 4, v1")
            self.bw = [self.windows(8, 20, allst), self.windows(9, 23, allst), self.windows(7, 26, allst)]
            if st[0] == 0: self.barrier("C", 0)
        wa0, wa1, wb = self.bw
        wa = [wa0, wa1]
        FT = lambda t, m: 40 + 36 * t + 4 * m
        FE = lambda t, f: 48 + 36 * t + 4 * f
        AC = lambda m, f: 200 + 28 * m + 4 * f

        def reads(s, u, t):
            r = [f"ds_read_b128 {vq(FT(t, m))}, {self.ad(wa[u], s, 2048*m)}" for m in range(2)]
            r += [f"ds_read_b128 {vq(FE(t, f))}, {self.ad(wb, s, 16384 + 7168*u + 1024*f)}" for f in range(7)]
            return r

        def mfmas(t, z, u):
            return [f"{MF} {vq(AC(m, f))}, {vq(FE(t, f))}, {vq(FT(t, m))}, {'0' if z else vq(AC(m, f))}" for f in range(7) for m in range(2)]
        if n:
            self.gemm(st, 2, reads, mfmas, first_c_zero=(ph == "big1"))
        if ph == "big2":
            SB = S_P
            self.ids_big(T0, T1, T2)
            a.I(f"s_lshl_b32 s{T0}, s{T0}, 2", f"s_add_u32 s{T0}, s{T0}, s{T1}", f"s_lshl_b32 s{T0}, s{T0}, 2", f"s_add_u32 s{T0}, s{T0}, s{S_WAVE}")
            a.I(f"s_lshl_b32 s{T0}, s{T0}, 2", f"s_add_u32 s{T0}, s{T0}, s{T2}", f"s_mul_i32 s{SB}, s{T0}, 7168", f"s_add_u32 s{SB}, s{SB}, {PART_WS}")
            a.I(f"s_add_u32 s{SB+1}, s{SB}, 4096")
            lin = wb[0]
            for pc in range(7):
                if pc < 6:
                    m, P = divmod(pc, 3)
                    q = AC(m, 2 * P); self.pack(q, q, AC(m, 2 * P + 1))
                else:
                    q = AC(0, 6); self.pack(q, q, AC(1, 6))
                a.I(f"buffer_store_dwordx4 {vq(q)}, v{lin}, {srd(R_WK)}, s{SB + pc//4} offen offset:{1024*(pc%4)} sc1")

    def c_wo(self):
        a = self.a
        st = list(range(self.first["wo"], self.first["wo"] + 4))
        T0, T1, T2 = S_T0, S_T1, S_T2
        a.I("v_lshrrev_b32 v4, 2, v3", "v_lshl_add_u32 v6, v2, 2, v4", "v_lshlrev_b32 v6, 7, v6")
        a.I("v_and_b32 v4, 2, v4", "v_lshlrev_b32 v4, 1, v4", "v_and_b32 v7, 3, v3", "v_or_b32 v4, v4, v7")
        a.I(f"s_and_b32 s{T0}, s{S_WAVE}, 1", f"s_lshl_b32 s{T0}, s{T0}, 2", f"v_xor_b32 v4, s{T0}, v4", "v_lshl_add_u32 v6, v4, 4, v6")
        a.I("v_cmp_eq_u32 vcc, 3, v2", "v_add_u32 v7, 2048, v6", "v_cndmask_b32 v7, v7, v6, vcc")
        w1, w2 = self.windows(6, 10, st), self.windows(7, 13, st)
        a.I(f"s_lshr_b32 s{T0}, s{S_WAVE}, 1", f"s_lshl_b32 s{T0}, s{T0}, 13", "v_lshlrev_b32 v8, 4, v1", f"v_add_u32 v8, s{T0}, v8")
        wb = self.windows(8, 16, st)
        SB = S_P + 2
        a.I("v_mul_u32_u24 v5, 1792, v3", "v_lshl_add_u32 v5, v2, 4, v5")
        a.I(f"s_and_b32 s{T0}, s{S_Y}, 3", f"s_lshl_b32 s{T1}, s{S_X}, 2", f"s_add_u32 s{T0}, s{T0}, s{T1}", f"s_lshl_b32 s{T0}, s{T0}, 1")
        a.I(f"s_lshr_b32 s{T1}, s{S_WAVE}, 1", f"s_add_u32 s{T0}, s{T0}, s{T1}", f"s_mul_i32 s{SB}, s{T0}, {32*1792}")
        a.I(f"s_lshr_b32 s{T0}, s{S_Y}, 2", f"s_min_u32 s{T0}, s{T0}, 6", f"s_lshl_b32 s{T0}, s{T0}, 1", f"s_and_b32 s{T1}, s{S_WAVE}, 1", f"s_add_u32 s{T0}, s{T0}, s{T1}")
        a.I(f"s_lshl_b32 s{T0}, s{T0}, 6", f"s_add_u32 s{SB}, s{SB}, s{T0}", f"s_add_u32 s{SB+1}, s{SB}, {16*1792}")
        if st[0] == 0: self.barrier("C", 0)
        FW = lambda t, f: 40 + 16 * t + 4 * f
        FO = lambda t, m: 48 + 16 * t + 4 * m
        AC = lambda m, f: 112 + 8 * m + 4 * f

        def reads(s, u, t):
            r = []
            for f in range(2):
                r.append(f"ds_read_b64_tr_b16 {vq(FW(t, f), 2)}, {self.ad(w1, s, 3584*u + 8*f)}")
                r.append(f"ds_read_b64_tr_b16 {vq(FW(t, f) + 2, 2)}, {self.ad(w2, s, 3584*u + 8*f)}")
            r += [f"ds_read_b128 {vq(FO(t, m))}, {self.ad(wb, s, 16384 + 4096*m + 1024*u)}" for m in range(2)]
            return r

        def mfmas(t, z, u):
            return [f"{MF} {vq(AC(m, f))}, {vq(FW(t, f))}, {vq(FO(t, m))}, {'0' if z else vq(AC(m, f))}" for f in range(2) for m in range(2)]
        self.gemm(st, 4, reads, mfmas)
        for m in range(2):
            q = AC(m, 0)
            self.pack(q, q, AC(m, 1))
            a.I(f"buffer_store_dwordx4 {vq(q)}, v5, {srd(R_OUT)}, s{SB+m} offen")

    def attention(self, sK, role):
        a = self.a
        T0, T1, T2, T3 = S_T0, S_T1, S_T2, S_T3
        bK, bV = (sK % NSLOT) * SLOT, ((sK + 1) % NSLOT) * SLOT
        S = lambda n: 112 + 4 * n
        FR = lambda n: 40 + 4 * n
        OA = 184
        VQ = 192
        A0 = 92 if role == "L" else 84
        SW2, SREL, SKB, SC_, SOB = A0, A0 + 1, A0 + 2, A0 + 3, S_T3
        NEG = f32bits(-1e30)

        def bar(bb):
            if bb >= self.N: return
            if role == "L": self.attn_loader_cb(bb)
            else: self.barrier("C", bb)
        self.pos16(10)
        a.I(f"s_lshr_b32 s{SW2}, s{S_WAVE}, 1", f"s_lshl_b32 s{T0}, s{SW2}, 11", f"s_add_u32 s{T1}, s{T0}, {bK}")
        a.I(f"v_add_u32 v11, s{T1}, v10")
        a.I(f"s_lshl_b32 s{T1}, s{S_WAVE}, 10", f"s_add_u32 s{T1}, s{T1}, {bK + 24576}", f"v_add_u32 v12, s{T1}, v10")
        a.I(f"ds_read_b128 {vq(VQ)}, v12")
        for n in range(18):
            a.I(f"ds_read_b128 {vq(FR(n))}, v11 offset:{1024*n}")
        a.I("v_lshrrev_b32 v4, 2, v3", "v_lshl_add_u32 v4, v2, 2, v4", "v_bfe_u32 v13, v3, 1, 1", "v_mul_u32_u24 v14, 28, v13", "v_xor_b32 v4, v4, v14")
        a.I("v_lshlrev_b32 v4, 4, v4", "v_and_b32 v13, 1, v3", "v_lshl_add_u32 v4, v13, 3, v4")
        a.I(f"s_add_u32 s{T1}, s{T0}, {bV}", f"v_add_u32 v13, s{T1}, v4")
        a.I(f"s_lshr_b32 s{T1}, s{S_Y}, 1", f"s_lshl_b32 s{T1}, s{T1}, 3", f"s_lshl_b32 s{T2}, s{SW2}, 1", f"s_add_u32 s{T1}, s{T1}, s{T2}", f"s_sub_u32 s{SKB}, s{T1}, 16")
        a.I(f"s_and_b32 s{T1}, s{S_WAVE}, 1", f"s_lshl_b32 s{T1}, s{T1}, 4", f"s_add_u32 s{SREL}, s{T1}, 256")
        a.I("v_lshlrev_b32 v4, 2, v2", "v_sub_u32 v14, v3, v4", f"v_mov_b32 v15, {hex(NEG)}", "v_mov_b32 v16, 0", "v_mov_b32 v17, 256")
        for n in range(18):
            if n in (0, 1, 16, 17):
                a.I(f"s_sub_u32 s{T1}, s{SREL}, {16*n}")
                if n < 2:
                    a.I(f"s_cmp_lt_i32 s{SKB}, {-n}", f"s_cselect_b32 s{T1}, 0x10000, s{T1}")
                a.I(f"v_add_u32 v4, s{T1}, v14")
                for r in range(4):
                    a.I(f"v_subrev_u32 v5, {r}, v4" if r else "v_mov_b32 v5, v4")
                    a.I(f"v_cmp_gt_u32 vcc, v17, v5", f"v_cndmask_b32 v{S(n)+r}, v15, v16, vcc")
            else:
                a.I(f"s_cmp_lt_i32 s{SKB}, {-n}", f"s_cselect_b32 s{T1}, {hex(NEG)}, 0")
                for r in range(4): a.I(f"v_mov_b32 v{S(n)+r}, s{T1}")
        a.I("s_waitcnt lgkmcnt(0)")
        bar(sK + 1)
        for n in range(18):
            a.I(f"{MF} {vq(S(n))}, {vq(FR(n))}, {vq(VQ)}, {vq(S(n))}")
        vreads = []
        for T in range(9):
            for dt in range(2):
                for h2 in range(2):
                    vreads.append(f"ds_read_b64_tr_b16 {vq(FR(2*T+dt) + 2*h2, 2)}, v13 offset:{1024*(2*T+h2) + 512*dt}")
        vi = 0
        M = 18
        regs = [S(n) + r for n in range(18) for r in range(4)]
        a.I(vreads[0]); a.I(vreads[1]); vi = 2
        a.I(f"v_max3_f32 v{M}, v{regs[0]}, v{regs[1]}, v{regs[2]}")
        a.I(f"v_max3_f32 v{M+1}, v{regs[3]}, v{regs[4]}, v{regs[5]}")
        k = 6; t = 0
        while k < 72:
            a.I(f"v_max3_f32 v{M+t}, v{M+t}, v{regs[k]}, v{regs[k+1]}")
            k += 2; t ^= 1
            if vi < len(vreads): a.I(vreads[vi]); vi += 1
        while vi < len(vreads): a.I(vreads[vi]); vi += 1
        a.I(f"v_max_f32 v{M}, v{M}, v{M+1}")
        a.I(f"v_mov_b32 v{M+1}, v{M}", f"v_permlane16_swap_b32 v{M}, v{M+1}", f"v_max_f32 v{M}, v{M}, v{M+1}")
        a.I(f"v_mov_b32 v{M+1}, v{M}", f"v_permlane32_swap_b32 v{M}, v{M+1}", f"v_max_f32 v{M}, v{M}, v{M+1}")
        c = math.log2(math.e) / math.sqrt(28.0)
        a.I(f"s_mov_b32 s{SC_}, {hex(f32bits(c))}")
        a.I(f"v_mul_f32 v{M}, s{SC_}, v{M}")
        a.I("s_waitcnt lgkmcnt(0)")
        bar(sK + 2)
        pend = []
        for T in range(9):
            rr = [S(2 * T) + r for r in range(8)]
            for x in rr: a.I(f"v_fma_f32 v{x}, v{x}, s{SC_}, -v{M}")
            for m in pend: a.I(m)
            for x in rr: a.I(f"v_exp_f32 v{x}, v{x}")
            self.pack(S(2 * T), S(2 * T), S(2 * T + 1))
            pend = [f"{MF} {vq(OA + 4*dt)}, {vq(FR(2*T+dt))}, {vq(S(2*T))}, {'0' if T == 0 else vq(OA + 4*dt)}" for dt in range(2)]
        for m in pend: a.I(m)
        a.I(f"s_lshr_b32 s{T1}, s{S_Y}, 1", f"s_lshl_b32 s{T1}, s{T1}, 3", f"s_add_u32 s{T1}, s{T1}, s{S_WAVE}", f"s_lshl_b32 s{T1}, s{T1}, 4")
        a.I(f"s_and_b32 s{T2}, s{S_Y}, 1", f"s_add_u32 s{T1}, s{T1}, s{T2}", f"s_lshl_b32 s{T2}, s{S_X}, 1", f"s_add_u32 s{T1}, s{T1}, s{T2}")
        a.I(f"s_lshl_b32 s{T1}, s{T1}, 10", f"s_add_u32 s{SOB}, s{T1}, {O_WS}")
        a.I("v_lshlrev_b32 v10, 4, v1", "v_cmp_eq_u32 vcc, 3, v2")
        a.I(f"v_mov_b32 v{M}, v{OA+4}", f"v_mov_b32 v{M+1}, v{OA+4}", f"v_permlane32_swap_b32 v{M}, v{M+1}")
        a.I(f"v_mov_b32 v{M}, v{M+1}", f"v_permlane16_swap_b32 v{M}, v{M+1}", f"v_rcp_f32 v{M}, v{M+1}")
        for r in range(8): a.I(f"v_mul_f32 v{OA+r}, v{OA+r}, v{M}")
        self.pack(OA, OA, OA + 4)
        a.I(f"v_cndmask_b32 v{OA+2}, v{OA+2}, v16, vcc", f"v_cndmask_b32 v{OA+3}, v{OA+3}, v16, vcc")
        a.I(f"buffer_store_dwordx4 {vq(OA)}, v10, {srd(R_WK)}, s{SOB} offen sc1")
        if role == "L": self.fifo.append(("ost", 0))

    def only_wave(self, w, fn):
        a = self.a
        sk = a.newlabel("L_ow")
        a.I(f"s_cmp_eq_u32 s{S_WAVE}, {w}", f"s_cbranch_scc0 {sk}")
        fn()
        a.L(sk)

    def spin(self, vdst, ldtext, cmptext):
        a = self.a
        top, ok = a.newlabel("L_sp"), a.newlabel("L_ok")
        a.I(f"s_mov_b32 s{S_SPIN}, 0")
        a.L(top)
        a.I("s_waitcnt vmcnt(0)", cmptext, f"s_cbranch_vccz {ok}")
        a.I(f"s_add_u32 s{S_SPIN}, s{S_SPIN}, 1", f"s_cmp_ge_u32 s{S_SPIN}, 0x40000", f"s_cbranch_scc1 {ok}")
        a.I(ldtext, f"s_branch {top}")
        a.L(ok)

    def flag_store(self, f):
        a = self.a
        a.I(f"s_lshl_b32 s{S_T0}, s2, 7", f"s_add_u32 s{S_T0}, s{S_T0}, {FLAG_WS + f*32768}")
        a.I(f"v_mov_b32 v36, s{S_NONCE}", "v_mov_b32 v37, 0", "s_mov_b64 exec, 1")
        a.I(f"buffer_store_dword v36, v37, {srd(R_WK)}, s{S_T0} offen sc1")
        a.I("s_mov_b64 exec, -1")

    def dep_addr(self, dep, v):
        a = self.a
        T0, T1, T2, T3 = S_T0, S_T1, S_T2, S_T3
        if dep == "ab":
            self.ids_big(T0, T1, T2)
            a.I(f"s_lshr_b32 s{T0}, s{T2}, 1", f"s_lshl_b32 s{T0}, s{T0}, 2", f"s_add_u32 s{T0}, s{T0}, s{T1}", f"s_lshl_b32 s{T0}, s{T0}, 5")
            a.I(f"s_and_b32 s{T2}, s{T2}, 1", f"s_lshl_b32 s{T2}, s{T2}, 2", f"s_add_u32 s{T0}, s{T0}, s{T2}")
            a.I(f"v_lshrrev_b32 v4, 2, v3", f"v_and_b32 v{v}, 3, v3", f"v_lshl_add_u32 v{v}, v{v}, 3, v4", f"v_add_u32 v{v}, s{T0}, v{v}")
            f = F_AB
        elif dep == "qkv":
            a.I(f"s_and_b32 s{T0}, s{S_Y}, 1", f"s_lshl_b32 s{T1}, s{S_X}, 1", f"s_add_u32 s{T0}, s{T0}, s{T1}", f"s_lshr_b32 s{T1}, s{S_Y}, 1")
            a.I("v_lshrrev_b32 v4, 2, v3", "v_min_u32 v4, 2, v4", f"v_lshl_add_u32 v4, v4, 4, s{T0}", "v_mul_u32_u24 v4, 0x5556, v4", "v_lshrrev_b32 v4, 16, v4")
            a.I(f"v_and_b32 v{v}, 3, v3", f"v_min_u32 v{v}, 2, v{v}", f"v_cmp_gt_u32 vcc, 4, v3", f"v_cndmask_b32 v{v}, v{v}, v37, vcc")
            a.I(f"v_sub_u32 v{v}, s{T1}, v{v}", f"v_max_i32 v{v}, 0, v{v}")
            a.I(f"v_and_b32 v39, 1, v{v}", "v_lshl_add_u32 v4, v4, 1, v39", f"v_lshrrev_b32 v{v}, 1, v{v}", f"v_lshl_add_u32 v{v}, v4, 3, v{v}")
            f = F_QKV
        elif dep == "attn":
            a.I(f"s_and_b32 s{T0}, s{S_Y}, 3", f"s_lshl_b32 s{T1}, s{S_X}, 2", f"s_add_u32 s{T0}, s{T0}, s{T1}", f"s_lshr_b32 s{T0}, s{T0}, 1", f"s_lshl_b32 s{T0}, s{T0}, 4")
            a.I(f"v_and_b32 v4, 1, v3", f"v_lshrrev_b32 v{v}, 1, v3", f"v_lshl_add_u32 v{v}, v4, 3, v{v}", f"v_add_u32 v{v}, s{T0}, v{v}")
            f = F_O
        elif dep == "part":
            a.I(f"s_and_b32 s{T0}, s{S_X}, 1", f"s_lshl_b32 s{T1}, s{S_Y}, 3", f"s_add_u32 s{T0}, s{T0}, s{T1}")
            a.I(f"v_and_b32 v{v}, 3, v3", f"v_lshl_add_u32 v{v}, v{v}, 1, s{T0}")
            f = F_PART
        a.I(f"v_lshlrev_b32 v{v}, 7, v{v}", f"v_add_u32 v{v}, {FLAG_WS + f*32768}, v{v}")

    def plan_sync(self):
        o = self.opt
        a = self.a
        F = self.first
        last = lambda ph: F[ph] + len(self.mk_stages(ph)) - 1
        used = False

        def publish(f, b, loaders=False):
            assert b < self.N, (f, b)
            self.hook(self.pre, "C", b, lambda: a.I("s_waitcnt vmcnt(0)"))
            if loaders:
                self.hook(self.pre, "L", b, lambda: self.wait_fifo(lambda e: e[0] == "ost"))
            self.hook(self.post, "C", b, lambda: self.only_wave(0, lambda: self.flag_store(f)))

        def consume(dep, b_issue, b_ok):
            ld = f"buffer_load_dword v38, v39, {srd(R_WK)}, 0 offen sc1"

            def iss():
                a.I("v_mov_b32 v37, 0")
                self.dep_addr(dep, 38)
                a.I("v_mov_b32 v39, v38")
                a.I(ld)
            self.hook(self.post, "C", b_issue, lambda: self.only_wave(0, iss))
            self.hook(self.pre, "C", b_ok, lambda: self.only_wave(0, lambda: self.spin(38, ld, f"v_cmp_ne_u32 vcc, s{S_NONCE}, v38")))
            for st in self.stages:
                for g in st.groups:
                    if g.dep == dep: g.issue_at = b_ok
        if self.has("ab") and self.has("big1"):
            used = True
            publish(F_AB, last("ab") + 1 + o.pub_ab)
            consume("ab", F["big1"] - o.lead_ab - 1, F["big1"] - o.lead_ab)
        if self.has("qkv") and self.has("attn"):
            used = True
            publish(F_QKV, last("qkv") + 1 + o.pub_qkv)
            consume("qkv", F["attn"] - o.lead_qkv - 1, F["attn"] - o.lead_qkv)
        if self.has("attn") and self.has("wo"):
            used = True
            publish(F_O, last("attn") + 1 + o.pub_o, loaders=True)
            consume("attn", F["wo"] - o.lead_o - 1, F["wo"] - o.lead_o)
        if self.has("big2") and self.has("reduce"):
            used = True
            publish(F_PART, last("big2") + 1 + o.pub_part)
        self.sync = used
        if used:
            ld = f"buffer_load_dword v38, v37, {srd(R_DBG)}, 0 offen sc1"

            def n_iss():
                a.I("v_mov_b32 v37, 0", ld)

            def n_chk():
                self.spin(38, ld, "v_cmp_eq_u32 vcc, 0, v38")
                a.I(f"v_readfirstlane_b32 s{S_NONCE}, v38")
            self.pre.setdefault(("C", 3), []).insert(0, lambda: self.only_wave(0, n_chk))
            self.post.setdefault(("C", 2), []).insert(0, lambda: self.only_wave(0, n_iss))

    def reduce(self):
        a = self.a
        T0, T1, T2, T3 = S_T0, S_T1, S_T2, S_T3
        if self.sync and self.has("big2"):
            ldn = f"buffer_load_dword v36, v37, {srd(R_DBG)}, 0 offen sc1"
            ld = f"buffer_load_dword v38, v39, {srd(R_WK)}, 0 offen sc1"
            a.I("v_mov_b32 v37, 0", ldn)
            self.dep_addr("part", 39)
            a.I(ld)
            self.spin(38, ld, "v_cmp_ne_u32 vcc, v36, v38")
        SB, SO = S_P, S_P + 1
        self.ids_big(T0, T1, T2)
        a.I(f"s_lshl_b32 s{T3}, s{T0}, 2", f"s_add_u32 s{T3}, s{T3}, s{T2}", f"s_mul_i32 s{SO}, s{T3}, {32*1792}")
        a.I(f"s_mul_i32 s{T3}, s{T1}, 224", f"s_add_u32 s{SO}, s{SO}, s{T3}", f"s_add_u32 s{SO}, s{SO}, 896")
        a.I(f"s_lshl_b32 s{T0}, s{T0}, 2", f"s_add_u32 s{T0}, s{T0}, s{T1}", f"s_lshl_b32 s{T0}, s{T0}, 2", f"s_add_u32 s{T0}, s{T0}, s{T2}")
        a.I(f"s_mul_i32 s{SB}, s{T0}, {4*7168}", f"s_add_u32 s{SB}, s{SB}, {PART_WS}")
        a.I(f"s_lshl_b32 s{T0}, s{S_LW}, 10", f"s_add_u32 s{SB}, s{SB}, s{T0}")
        a.I("v_lshlrev_b32 v10, 4, v1")
        for h in range(2):
            for k in range(4):
                a.I(f"s_add_u32 s{T0}, s{SB}, {7168*k + 4096*h}")
                a.I(f"buffer_load_dwordx4 {vq(40 + 16*h + 4*k)}, v10, {srd(R_WK)}, s{T0} offen sc1")
        a.I("v_mul_u32_u24 v11, 1792, v3", "v_lshl_add_u32 v12, v2, 3, v11", "v_lshl_add_u32 v11, v2, 4, v11")
        a.I("s_mov_b32 s90, 0xffff0000")
        for h in range(2):
            a.I(f"s_waitcnt vmcnt({4 - 4*h + (0 if h == 0 else 1)})")
            base = 40 + 16 * h
            acc = 80 + 8 * h
            for d in range(4):
                a.I(f"v_lshlrev_b32 v{acc+2*d}, 16, v{base+d}", f"v_and_b32 v{acc+2*d+1}, s90, v{base+d}")
            for k in range(1, 4):
                for d in range(4):
                    a.I(f"v_lshlrev_b32 v100, 16, v{base+4*k+d}", f"v_and_b32 v101, s90, v{base+4*k+d}")
                    a.I(f"v_add_f32 v{acc+2*d}, v{acc+2*d}, v100", f"v_add_f32 v{acc+2*d+1}, v{acc+2*d+1}, v101")
            self.pack(acc, acc, acc + 4)
            if h == 0:
                a.I(f"s_lshl_b32 s{T0}, s{S_LW}, 6", f"s_cmp_eq_u32 s{S_LW}, 3", f"s_cselect_b32 s{T0}, {16*1792}, s{T0}", f"s_add_u32 s{T0}, s{T0}, s{SO}")
                a.I(f"buffer_store_dwordx4 {vq(acc)}, v11, {srd(R_OUT)}, s{T0} offen")
            else:
                l6, le = a.newlabel("L_r6"), a.newlabel("L_re")
                a.I(f"s_cmp_ge_u32 s{S_LW}, 2", f"s_cbranch_scc1 {l6}")
                a.I(f"s_lshl_b32 s{T0}, s{S_LW}, 6", f"s_add_u32 s{T0}, s{T0}, {16*1792 + 64}", f"s_add_u32 s{T0}, s{T0}, s{SO}")
                a.I(f"buffer_store_dwordx4 {vq(acc)}, v11, {srd(R_OUT)}, s{T0} offen")
                a.I(f"s_branch {le}")
                a.L(l6)
                a.I(f"s_cmp_eq_u32 s{S_LW}, 2", f"s_cbranch_scc0 {le}")
                a.I(f"s_add_u32 s{T0}, s{SO}, 192", f"s_add_u32 s{T1}, s{SO}, {16*1792 + 192}")
                a.I(f"buffer_store_dwordx2 {vq(acc, 2)}, v12, {srd(R_OUT)}, s{T0} offen")
                a.I(f"buffer_store_dwordx2 {vq(acc+2, 2)}, v12, {srd(R_OUT)}, s{T1} offen")
                a.L(le)

    def build(self):
        a = self.a
        self.plan_sync()
        self.prologue()
        lload = a.newlabel("L_loader")
        a.I(f"s_cmp_ge_u32 s{S_WAVE}, 4", f"s_cbranch_scc1 {lload}")
        self.srds()
        if self.opt.warm:
            def warm():
                here = a.newlabel("L_pc")
                a.I("s_getpc_b64 s[88:89]")
                a.L(here)
                a.I("s_and_b32 s89, s89, 0xffff", f"s_mov_b32 s90, {self.end}-{here}", "s_mov_b32 s91, 0x20000")
                a.I("v_lshlrev_b32 v4, 7, v1")
                for i in range(0, self.opt.warm, 8192):
                    a.I(f"s_mov_b32 s{S_T0}, {i}", f"buffer_load_dword v196, v4, s[88:91], s{S_T0} offen")
            self.only_wave(2, warm)
        if self.sync:
            def wr_nonce():
                sk = a.newlabel("L_nn")
                a.I("s_cmp_eq_u32 s2, 0", f"s_cbranch_scc0 {sk}")
                a.I("s_memrealtime s[92:93]", "s_waitcnt lgkmcnt(0)", "s_or_b32 s92, s92, 1")
                a.I("v_mov_b32 v4, s92", "v_mov_b32 v5, 0", "s_mov_b64 exec, 1")
                a.I(f"buffer_store_dword v4, v5, {srd(R_DBG)}, 0 offen sc1")
                a.I("s_mov_b64 exec, -1")
                a.L(sk)
            self.only_wave(1, wr_nonce)
        for k, ph in enumerate(self.phases):
            if ph == "ab": self.c_ab()
            elif ph == "qkv": self.c_qkv()
            elif ph in ("big1", "big2"): self.c_big(ph)
            elif ph == "attn":
                if self.first[ph] == 0: self.barrier("C", 0)
                self.attention(self.first[ph], role="C")
            elif ph == "wo": self.c_wo()
            self.stamp(k, wave=3)
        a.I(f"s_branch {self.end}")
        a.L(lload)
        self.loader()
        a.L(self.end)
        a.I("s_endpgm")
        return a.render()

    def descriptor(self):
        return f""".amdhsa_kernel {self.name}
  .amdhsa_next_free_vgpr 256
  .amdhsa_next_free_sgpr 102
  .amdhsa_accum_offset 256
  .amdhsa_group_segment_fixed_size 0
  .amdhsa_kernarg_size 88
  .amdhsa_user_sgpr_count 2
  .amdhsa_user_sgpr_kernarg_segment_ptr 1
  .amdhsa_system_sgpr_workgroup_id_x 1
.end_amdhsa_kernel
"""


def main():
    ap = argparse.ArgumentParser()
    ap.add_argument("out")
    ap.add_argument("--split", default="ab,qkv,big1,attn,big2,wo,reduce", help="kernels separated by / ; phases by ,")
    ap.add_argument("--n1", type=int, default=10)
    ap.add_argument("--pub_ab", type=int, default=2)
    ap.add_argument("--pub_qkv", type=int, default=3)
    ap.add_argument("--pub_o", type=int, default=2)
    ap.add_argument("--pub_part", type=int, default=3)
    ap.add_argument("--lead_ab", type=int, default=1)
    ap.add_argument("--lead_qkv", type=int, default=3)
    ap.add_argument("--lead_o", type=int, default=1)
    ap.add_argument("--warm", type=int, default=32768)
    ap.add_argument("--stamps", action="store_true")
    opt = ap.parse_args()
    kernels = [k.split(",") for k in opt.split.split("/")]
    hdr = open(f"cdna_kernels/{NAME}.s.ref").read().split("; Override launch")[0]
    lds = SLOT * NSLOT
    body = []; desc = []; launches = []
    lab = 0
    for i, ph in enumerate(kernels):
        nm = f"{NAME}_kernel" if len(kernels) == 1 else f"part{i}_kernel"
        opt.kidx = i
        k = Kernel(nm, ph, opt)
        k.a.nlab = lab
        body.append(k.build()); desc.append(k.descriptor())
        lab = k.a.nlab
        if len(kernels) == 1:
            launches.append(f"; @launch grid=(256,1,1) block=(512,1,1) lds={lds}")
        else:
            launches.append(f"; @launch kernel={nm} grid=(256,1,1) block=(512,1,1) lds={lds}")
    txt = hdr + "\n".join(launches) + '\n.amdgcn_target "amdgcn-amd-amdhsa--gfx950"\n.text\n' + "".join(body)
    txt += '.section .rodata,"a"\n' + "".join(".p2align 6\n" + d for d in desc)
    open(opt.out, "w").write(txt)


if __name__ == "__main__":
    main()
```

```python
import sys, math, argparse, struct
sys.path.insert(0, "work")
from asmlib import Asm

NAME = "concat_heads__sliding_block__spectral_fnet__prompt"
SLOT = 32768
NSLOT = 5
MF = "v_mfma_f32_16x16x32_bf16"

AB_WS = 0
QKV_WS = 4 << 20
O_WS = 10 << 20
PART_WS = 12 << 20
FLAG_WS = 20 << 20
STAMP_WS = 24 << 20
F_AB, F_QKV, F_O, F_PART = 0, 1, 2, 3

S_PTR = 4
S_OUT, S_DBG, S_WS = 20, 22, 24
R_XA, R_WQKV, R_WO, R_XB, R_WS_, R_WD, R_WK, R_OUT, R_DBG = 28, 32, 36, 40, 44, 48, 52, 56, 60
S_WAVE, S_X, S_Y, S_LW = 64, 65, 66, 67
S_NONCE = 68
S_T0, S_T1, S_T2, S_T3 = 70, 71, 72, 73
S_M = 74
S_P = 76
S_SPIN = 69


def srd(r):
    return f"s[{r}:{r+3}]"


def vq(r, n=4):
    return f"v[{r}:{r+n-1}]"


def f32bits(x):
    return struct.unpack("<I", struct.pack("<f", x))[0]


class Group:
    def __init__(self, rsrc, voffs, sbase, sconst, ldsoff, wstride, flags="", half_last=False, dep=None):
        self.rsrc, self.voffs, self.sbase, self.sconst = rsrc, voffs, sbase, sconst
        self.ldsoff, self.wstride, self.flags, self.half_last, self.dep = ldsoff, wstride, flags, half_last, dep
        self.issue_at = None


class Stage:
    def __init__(self, phase, j, groups):
        self.phase, self.j, self.groups = phase, j, groups


VL = {}
_n = 200
for nm, cnt in (("abA", 2), ("abB", 4), ("qkvA", 4), ("qkvB", 3), ("bigA", 4), ("lin3584", 1), ("lin2k", 1), ("lin16k", 1), ("woA", 4)):
    VL[nm] = list(range(_n, _n + cnt)); _n += cnt
SL = {k: S_P + i for i, k in enumerate(["abA", "abB", "qkvA", "qkvB", "bigA", "bigB", "k0", "k1", "k2", "q", "woA", "woB",
                                        "w2048", "w3072", "w3584", "w4096"])}
KV_DELTA = 16 * 128 * 1024


class Kernel:
    def __init__(self, name, phases, opt):
        self.name, self.phases, self.opt = name, phases, opt
        self.a = Asm()
        self.stages = []
        self.first = {}
        for ph in phases:
            self.first[ph] = len(self.stages)
            self.stages += self.mk_stages(ph)
        self.N = len(self.stages)
        self.pre = {}
        self.post = {}
        self.has = lambda p: p in phases

    def mk_stages(self, ph):
        o = self.opt
        sc = "sc1"
        if ph == "ab":
            return [Stage(ph, j, [Group(R_XB, VL["abA"], SL["abA"], 128 * j, 0, 2048),
                                  Group(R_WD, VL["abB"], SL["abB"], 128 * j, 8192, 3584, half_last=True)]) for j in range(7)]
        if ph == "qkv":
            return [Stage(ph, j, [Group(R_XA, VL["qkvA"], SL["qkvA"], 128 * j, 0, 4096),
                                  Group(R_WQKV, VL["qkvB"], SL["qkvB"], 64 * 2688 * j, 16384, 3072)]) for j in range(7)]
        if ph in ("big1", "big2"):
            rng = range(0, o.n1) if ph == "big1" else range(o.n1, 16)
            return [Stage(ph, j, [Group(R_WS_, VL["bigA"], SL["bigA"], 128 * j, 0, 4096),
                                  Group(R_WK, VL["lin3584"] * 4, SL["bigB"], 14336 * j, 16384, 3584, sc, half_last=True, dep="ab")]) for j in rng]
        if ph == "attn":
            k = [Group(R_WK, VL["lin2k"] * 2, SL[f"k{g}"], 0, 8192 * g, 2048, sc, dep="qkv") for g in range(3)]
            k.append(Group(R_WK, VL["lin2k"] * 2, SL["q"], 0, 24576, 2048, sc, dep="qkv"))
            v = [Group(R_WK, VL["lin2k"] * 2, SL[f"k{g}"], KV_DELTA, 8192 * g, 2048, sc, dep="qkv") for g in range(3)]
            return [Stage(ph, 0, k), Stage(ph, 1, v)]
        if ph == "wo":
            return [Stage(ph, j, [Group(R_WO, VL["woA"], SL["woA"], 112 * 896 * j, 0, 3584, half_last=True),
                                  Group(R_WK, VL["lin16k"] * 4, SL["woB"], 4096 * j, 16384, 4096, sc, dep="attn")]) for j in range(4)]
        if ph == "reduce":
            return []
        raise ValueError(ph)

    def hook(self, table, role, b, fn):
        table.setdefault((role, b), []).append(fn)

    def barrier(self, role, b):
        for fn in self.pre.get((role, b), []): fn()
        if self.opt.fine:
            self.a.I("s_memrealtime s[100:101]", "s_waitcnt lgkmcnt(0)", f"v_writelane_b32 v198, s100, {b}")
            if b > 0: self.a.I(f"v_writelane_b32 v199, s98, {b-1}")
        self.a.I("s_barrier")
        if self.opt.fine:
            self.a.I("s_memrealtime s[98:99]")
        for fn in self.post.get((role, b), []): fn()

    def fine_dump(self):
        if not self.opt.fine: return
        a = self.a
        a.I("s_memrealtime s[100:101]", "s_waitcnt lgkmcnt(0)", f"v_writelane_b32 v199, s98, {self.N-1}", "v_writelane_b32 v198, s100, 62", "v_writelane_b32 v198, s96, 63")
        a.I(f"s_lshl_b32 s100, s2, 3", f"s_add_u32 s100, s100, s{S_WAVE}", "s_lshl_b32 s100, s100, 9", f"s_add_u32 s100, s100, {STAMP_WS + (1 << 20) * (1 + self.opt.kidx)}")
        a.I("v_lshlrev_b32 v197, 3, v1")
        a.I(f"buffer_store_dwordx2 v[198:199], v197, {srd(R_WK)}, s100 offen")
        if self.opt.dbgspan:
            sk = a.newlabel("L_ds")
            a.I(f"s_cmp_eq_u32 s{S_WAVE}, 4", f"s_cbranch_scc0 {sk}")
            a.I("v_readlane_b32 s100, v198, 62", "s_not_b32 s101, s96", "v_mov_b32 v190, s100", "v_mov_b32 v191, s101", "v_mov_b32 v192, 0", "s_mov_b64 exec, 1")
            a.I(f"buffer_atomic_umax v190, v192, {srd(R_DBG)}, 0 offen offset:8 sc1", f"buffer_atomic_umax v191, v192, {srd(R_DBG)}, 0 offen offset:12 sc1")
            a.I("s_mov_b64 exec, -1")
            a.I("s_cmp_eq_u32 s2, 5", f"s_cbranch_scc0 {sk}")
            a.I("v_subrev_u32 v199, s96, v199", "v_mul_u32_u24 v190, 12, v1", "ds_bpermute_b32 v191, v190, v199", "v_lshlrev_b32 v192, 2, v1", "s_waitcnt lgkmcnt(0)")
            a.I("s_mov_b64 exec, 0xfff")
            a.I(f"buffer_store_dword v191, v192, {srd(R_DBG)}, 0 offen offset:16")
            a.L(sk)

    def prologue(self):
        a = self.a
        a.D(f".globl {self.name}\n.p2align 8\n.type {self.name},@function")
        a.L(self.name)
        self.end = a.newlabel("L_end")
        a.I(f"s_cmp_ge_u32 s2, 256", f"s_cbranch_scc1 {self.end}")
        a.I(f"s_load_dwordx16 s[{S_PTR}:{S_PTR+15}], s[0:1], 0")
        a.I(f"s_load_dwordx4 s[{S_OUT}:{S_OUT+3}], s[0:1], 64")
        a.I(f"s_load_dwordx2 s[{S_WS}:{S_WS+1}], s[0:1], 80")
        if self.opt.stamps or self.opt.fine:
            a.I("s_memrealtime s[96:97]", "v_mov_b32 v198, 0", "v_mov_b32 v199, 0")
        a.I("v_lshrrev_b32 v4, 6, v0", "v_and_b32 v1, 63, v0")
        a.I(f"v_readfirstlane_b32 s{S_WAVE}, v4")
        a.I("v_lshrrev_b32 v2, 4, v1", "v_and_b32 v3, 15, v1")
        a.I(f"s_and_b32 s{S_X}, s2, 7", f"s_lshr_b32 s{S_Y}, s2, 3")
        a.I(f"s_and_b32 s{S_LW}, s{S_WAVE}, 3")
        a.I("v_mov_b32 v37, 0", "v_mov_b32 v39, 0")

    def mk_srd(self, r, lo, nbytes, sel=None):
        a = self.a
        if sel is None:
            a.I(f"s_mov_b32 s{r}, s{lo}", f"s_and_b32 s{r+1}, s{lo+1}, 0xffff")
        else:
            a.I(f"s_cselect_b32 s{r}, s{sel}, s{lo}", f"s_cselect_b32 s{r+1}, s{sel+1}, s{lo+1}", f"s_and_b32 s{r+1}, s{r+1}, 0xffff")
        a.I(f"s_mov_b32 s{r+2}, {nbytes}", f"s_mov_b32 s{r+3}, 0x20000")

    def srds(self):
        a = self.a
        a.I("s_waitcnt lgkmcnt(0)")
        P = S_PTR
        self.mk_srd(R_XB, P + 6, 2048 * 896)
        a.I(f"s_cmp_ge_u32 s{S_Y}, 16")
        self.mk_srd(R_WD, P + 12, 448 * 896, sel=P + 14)
        self.mk_srd(R_XA, P + 0, 2048 * 896)
        self.mk_srd(R_WQKV, P + 2, 448 * 2688)
        self.mk_srd(R_WO, P + 4, 448 * 896)
        a.I(f"s_cmp_ge_u32 s{S_X}, 4")
        self.mk_srd(R_WS_, P + 8, 2048 * 4096, sel=P + 10)
        self.mk_srd(R_WK, S_WS, 0x10000000)
        self.mk_srd(R_OUT, S_OUT, 2048 * 1792)
        self.mk_srd(R_DBG, S_DBG, 256)

    def ids_big(self, mi, ni, ks):
        a = self.a
        a.I(f"s_lshr_b32 s{ks}, s{S_X}, 1")
        a.I(f"s_and_b32 s{mi}, s{S_X}, 1", f"s_lshl_b32 s{mi}, s{mi}, 3", f"s_lshr_b32 s{ni}, s{S_Y}, 2", f"s_add_u32 s{mi}, s{mi}, s{ni}")
        a.I(f"s_and_b32 s{ni}, s{S_Y}, 3")

    def loader_setup(self, ph):
        a = self.a
        T0, T1, T2, T3 = S_T0, S_T1, S_T2, S_T3
        LW = S_LW
        if ph == "common":
            a.I("v_lshrrev_b32 v5, 3, v1", "v_and_b32 v6, 7, v1", "v_lshlrev_b32 v7, 4, v1")
            a.I("v_xor_b32 v8, v5, v6", "v_lshlrev_b32 v8, 4, v8")
            for st in (2048, 3072, 3584, 4096):
                a.I(f"s_mul_i32 s{SL[f'w{st}']}, s{LW}, {st}")
            return
        if ph == "ab":
            r = VL["abA"]
            a.I("v_lshrrev_b32 v9, 2, v5", "v_lshlrev_b32 v9, 3, v9", "v_and_b32 v10, 3, v5", "v_add_u32 v9, v9, v10")
            a.I(f"s_lshr_b32 s{T0}, s{LW}, 1", f"s_lshl_b32 s{T0}, s{T0}, 5", f"s_and_b32 s{T1}, s{LW}, 1", f"s_lshl_b32 s{T1}, s{T1}, 2", f"s_add_u32 s{T0}, s{T0}, s{T1}")
            a.I(f"v_add_u32 v9, s{T0}, v9", f"v_mul_u32_u24 v9, 896, v9", f"v_add_u32 v{r[0]}, v9, v8")
            a.I(f"v_add_u32 v{r[1]}, {16*896-1024}, v{r[0]}")
            a.I(f"s_mul_i32 s{T0}, s{LW}, 28")
            for jj, reg in enumerate(VL["abB"]):
                a.I(f"s_add_u32 s{T1}, s{T0}, {8*jj}")
                a.I(f"v_add_u32 v9, s{T1}, v5")
                a.I("v_lshrrev_b32 v10, 5, v9", "v_lshlrev_b32 v10, 5, v10")
                a.I("v_bfe_u32 v11, v9, 2, 2", "v_lshl_add_u32 v10, v11, 3, v10")
                a.I("v_bfe_u32 v11, v9, 4, 1", "v_lshl_add_u32 v10, v11, 2, v10")
                a.I("v_and_b32 v11, 3, v9", "v_add_u32 v10, v10, v11")
                a.I("v_cmp_le_u32 vcc, 96, v9", "v_cndmask_b32 v10, v10, v9, vcc")
                a.I("v_mul_u32_u24 v10, 896, v10")
                a.I("v_and_b32 v11, 7, v9", "v_xor_b32 v11, v11, v6", f"v_lshl_add_u32 v10, v11, 4, v10")
                a.I(f"v_subrev_u32 v{reg}, {1024*jj}, v10")
            a.I(f"s_and_b32 s{T0}, s{S_Y}, 3", f"s_lshl_b32 s{T1}, s{S_X}, 2", f"s_add_u32 s{T0}, s{T0}, s{T1}", f"s_mul_i32 s{SL['abA']}, s{T0}, {64*896}")
            a.I(f"s_bfe_u32 s{T0}, s{S_Y}, 0x20002", f"s_mul_i32 s{SL['abB']}, s{T0}, {112*896}")
        elif ph == "qkv":
            r = VL["qkvA"]
            a.I(f"s_lshl_b32 s{T0}, s{LW}, 5", f"v_add_u32 v9, s{T0}, v5", "v_mul_u32_u24 v9, 896, v9", f"v_add_u32 v{r[0]}, v9, v8")
            for jj in range(1, 4):
                a.I(f"v_add_u32 v{r[jj]}, {jj*(8*896-1024)}, v{r[0]}")
            a.I(f"s_lshl_b32 s{T0}, s{LW}, 4")
            for jj, reg in enumerate(VL["qkvB"]):
                a.I(f"v_add_u32 v9, {64*jj}, v1")
                a.I("v_mul_u32_u24 v10, 0x5556, v9", "v_lshrrev_b32 v10, 18, v10")
                a.I("v_mul_u32_u24 v11, 12, v10", "v_sub_u32 v11, v9, v11")
                a.I("v_and_b32 v12, 8, v10")
                a.I(f"v_add_u32 v10, s{T0}, v10", "v_mul_u32_u24 v10, 2688, v10")
                a.I("v_lshl_add_u32 v10, v11, 4, v10", "v_sub_u32 v10, v10, v12")
                a.I(f"v_subrev_u32 v{reg}, {1024*jj}, v10")
            a.I(f"s_and_b32 s{T0}, s{S_Y}, 1", f"s_lshl_b32 s{T1}, s{S_X}, 1", f"s_add_u32 s{T0}, s{T0}, s{T1}", f"s_mul_i32 s{SL['qkvA']}, s{T0}, {128*896}")
            a.I(f"s_lshr_b32 s{T0}, s{S_Y}, 1", f"s_mul_i32 s{SL['qkvB']}, s{T0}, 168")
        elif ph == "big":
            r = VL["bigA"]
            a.I(f"s_lshl_b32 s{T0}, s{LW}, 5", f"v_add_u32 v9, s{T0}, v5", "v_lshlrev_b32 v9, 12, v9", f"v_add_u32 v{r[0]}, v9, v8")
            for jj in range(1, 4):
                a.I(f"v_add_u32 v{r[jj]}, {jj*(8*4096-1024)}, v{r[0]}")
            a.I(f"v_add_u32 v{VL['lin3584'][0]}, s{SL['w3584']}, v7")
            self.ids_big(T0, T1, T2)
            a.I(f"s_lshl_b32 s{SL['bigA']}, s{T0}, 19")
            a.I(f"s_and_b32 s{T3}, s{T2}, 1", f"s_lshl_b32 s{T0}, s{T3}, 11", f"s_add_u32 s{SL['bigA']}, s{SL['bigA']}, s{T0}")
            a.I(f"s_lshr_b32 s{T0}, s{T2}, 1", f"s_lshl_b32 s{T0}, s{T0}, 2", f"s_add_u32 s{T0}, s{T0}, s{T1}", f"s_lshl_b32 s{T0}, s{T0}, 5")
            a.I(f"s_lshl_b32 s{T3}, s{T3}, 4", f"s_add_u32 s{T0}, s{T0}, s{T3}", f"s_mul_i32 s{SL['bigB']}, s{T0}, 14336")
            if AB_WS: a.I(f"s_add_u32 s{SL['bigB']}, s{SL['bigB']}, {AB_WS}")
        elif ph == "attn":
            a.I(f"v_add_u32 v{VL['lin2k'][0]}, s{SL['w2048']}, v7")
            a.I(f"s_and_b32 s{T0}, s{S_Y}, 1", f"s_lshl_b32 s{T1}, s{S_X}, 1", f"s_add_u32 s{T0}, s{T0}, s{T1}", f"s_lshl_b32 s{T0}, s{T0}, 17")
            a.I(f"s_add_u32 s{T0}, s{T0}, {QKV_WS}")
            a.I(f"s_lshr_b32 s{T1}, s{S_Y}, 1")
            a.I(f"s_lshl_b32 s{T2}, s{T1}, 13", f"s_add_u32 s{SL['q']}, s{T0}, s{T2}")
            a.I(f"s_add_u32 s{T0}, s{T0}, {KV_DELTA}")
            for g in range(3):
                a.I(f"s_add_i32 s{T2}, s{T1}, {g-2}", f"s_max_i32 s{T2}, s{T2}, 0", f"s_lshl_b32 s{T2}, s{T2}, 13", f"s_add_u32 s{SL[f'k{g}']}, s{T0}, s{T2}")
        elif ph == "wo":
            r = VL["woA"]
            a.I(f"s_mul_i32 s{T0}, s{LW}, 28", f"v_add_u32 v9, s{T0}, v5", "v_mul_u32_u24 v9, 896, v9")
            a.I("v_and_b32 v10, 2, v5", "v_lshlrev_b32 v10, 1, v10", "v_xor_b32 v10, v10, v6", f"v_lshl_add_u32 v{r[0]}, v10, 4, v9")
            for jj in range(1, 4):
                a.I(f"v_add_u32 v{r[jj]}, {jj*(8*896-1024)}, v{r[0]}")
            a.I(f"s_lshl_b32 s{T0}, s{LW}, 14", f"v_add_u32 v{VL['lin16k'][0]}, s{T0}, v7")
            a.I(f"s_lshr_b32 s{T0}, s{S_Y}, 2", f"s_min_u32 s{T0}, s{T0}, 6", f"s_lshl_b32 s{SL['woA']}, s{T0}, 7")
            a.I(f"s_and_b32 s{T0}, s{S_Y}, 3", f"s_lshl_b32 s{T1}, s{S_X}, 2", f"s_add_u32 s{T0}, s{T0}, s{T1}", f"s_lshl_b32 s{T0}, s{T0}, 16")
            a.I(f"s_add_u32 s{SL['woB']}, s{T0}, {O_WS}")

    def issue_group(self, s, g):
        a = self.a
        base = (s % NSLOT) * SLOT + g.ldsoff
        a.I(f"s_add_u32 m0, s{SL[f'w{g.wstride}']}, {base}")
        if g.sconst:
            a.I(f"s_add_u32 s{S_T0}, s{g.sbase}, {g.sconst}")
            so = S_T0
        else:
            so = g.sbase
        n = len(g.voffs)
        for jj, v in enumerate(g.voffs):
            if g.half_last and jj == n - 1:
                a.I("s_mov_b32 exec_hi, 0")
            off = f" offset:{1024*jj}" if jj else ""
            fl = f" {g.flags}" if g.flags else ""
            a.I(f"buffer_load_dwordx4 v{v}, {srd(g.rsrc)}, s{so} offen{off}{fl} lds")
            self.fifo.append(("ld", s))
        if g.half_last:
            a.I("s_mov_b32 exec_hi, -1")

    def wait_fifo(self, pred):
        last = -1
        for i, e in enumerate(self.fifo):
            if pred(e): last = i
        if last < 0: return
        n = len(self.fifo) - 1 - last
        assert n <= 63
        self.a.I(f"s_waitcnt vmcnt({n})")
        self.fifo = self.fifo[last + 1:]

    def loader(self):
        a = self.a
        self.fifo = []
        N = self.N
        sched = {}
        for s, st in enumerate(self.stages):
            for g in st.groups:
                at = s - (NSLOT - 1) if s >= NSLOT else -1
                if g.issue_at is not None: at = max(at, g.issue_at)
                assert at < s, (st.phase, st.j, at, s)
                sched.setdefault(at, []).append((s, g))
        done = set()

        def setup_for(ph):
            key = "big" if ph.startswith("big") else ph
            if key not in done:
                done.add(key); self.loader_setup(key)
        self.loader_setup("common")
        if self.stages: setup_for(self.stages[0].phase)
        self.srds()
        for s, g in sched.get(-1, []):
            setup_for(self.stages[s].phase)
            self.issue_group(s, g)
        for ph in self.phases:
            if ph != "reduce": setup_for(ph)
        b = 0
        while b < N:
            self.wait_fifo(lambda e: e[0] == "ld" and e[1] <= b)
            self.barrier("L", b)
            for s, g in sched.get(b, []): self.issue_group(s, g)
            if self.stages[b].phase == "attn" and self.stages[b].j == 0:
                self.attn_loader_cb = lambda bb: self._attn_loader_bar(bb, sched)
                self.attention(b, role="L")
                b += 3 if b + 2 < N else 2
                continue
            b += 1
        if self.has("reduce"):
            self.reduce()
        self.stamp(15, wave=4)
        self.fine_dump()
        a.I(f"s_branch {self.end}")

    def _attn_loader_bar(self, bb, sched):
        self.wait_fifo(lambda e: e[0] == "ld" and e[1] <= bb)
        self.barrier("L", bb)
        for s, g in sched.get(bb, []): self.issue_group(s, g)

    def stamp(self, idx, wave):
        if not self.opt.stamps: return
        a = self.a
        sk = a.newlabel("L_st")
        a.I(f"s_cmp_eq_u32 s{S_WAVE}, {wave}", f"s_cbranch_scc0 {sk}")
        a.I("s_memrealtime s[98:99]", "s_waitcnt lgkmcnt(0)")
        a.I(f"s_lshl_b32 s100, s2, 7", f"s_add_u32 s100, s100, {STAMP_WS + self.opt.kidx * 65536 + idx * 8}")
        a.I("v_mov_b32 v198, s98", "v_mov_b32 v199, s96", "v_mov_b32 v197, 0")
        a.I("s_mov_b64 exec, 1")
        a.I(f"buffer_store_dwordx2 v[198:199], v197, {srd(R_WK)}, s100 offen")
        a.I("s_mov_b64 exec, -1")
        if wave >= 4: raise_ = True
        a.L(sk)

    def windows(self, base_reg, first, stages):
        wins = sorted({(s % NSLOT) // 2 for s in stages})
        out = {}
        for k, w in enumerate(wins):
            r = first + k
            if w == 0: self.a.I(f"v_mov_b32 v{r}, v{base_reg}")
            else: self.a.I(f"v_add_u32 v{r}, {65536*w}, v{base_reg}")
            out[w] = r
        return out

    @staticmethod
    def ad(wins, s, off):
        sl = s % NSLOT
        o = (sl % 2) * SLOT + off
        assert o < 65536
        return f"v{wins[sl // 2]} offset:{o}"

    def rm_base(self, d0, d1):
        a = self.a
        a.I("v_and_b32 v4, 7, v3", "v_xor_b32 v4, v4, v2", "v_lshlrev_b32 v4, 4, v4", f"v_lshl_add_u32 v{d0}, v3, 7, v4", f"v_xor_b32 v{d1}, 64, v{d0}")

    def gemm(self, stages, ksteps, reads, mfmas, first_c_zero=True):
        a = self.a
        seq = [(s, u) for s in stages for u in range(ksteps)]
        for r in reads(seq[0][0], seq[0][1], 0): a.I(r)
        for n, (s, u) in enumerate(seq):
            a.I("s_waitcnt lgkmcnt(0)")
            if u == ksteps - 1 and s + 1 < self.N:
                self.barrier("C", s + 1)
            rd = reads(seq[n + 1][0], seq[n + 1][1], (n + 1) % 2) if n + 1 < len(seq) else []
            mf = mfmas(n % 2, first_c_zero and n == 0, u)
            per = max(1, -(-len(rd) // max(1, len(mf) - 1)))
            k = 0
            for m in mf:
                a.I(m)
                for _ in range(per):
                    if k < len(rd):
                        a.I(rd[k]); k += 1
            assert k == len(rd)

    def pack(self, q, x, y):
        a = self.a
        a.I(f"v_cvt_pk_bf16_f32 v{q}, v{x}, v{x+1}", f"v_cvt_pk_bf16_f32 v{q+1}, v{x+2}, v{x+3}")
        a.I(f"v_cvt_pk_bf16_f32 v{q+2}, v{y}, v{y+1}", f"v_cvt_pk_bf16_f32 v{q+3}, v{y+2}, v{y+3}")

    def st_flags(self, ph_consumers):
        return " sc1"

    def c_ab(self):
        a = self.a
        st = list(range(self.first["ab"], self.first["ab"] + 7))
        T0, T1, T2 = S_T0, S_T1, S_T2
        self.rm_base(8, 9)
        a.I(f"s_and_b32 s{T0}, s{S_WAVE}, 1", f"s_lshl_b32 s{T0}, s{T0}, 12")
        a.I(f"v_add_u32 v6, s{T0}, v8", f"v_add_u32 v7, s{T0}, v9")
        wa = [self.windows(6, 10, st), self.windows(7, 13, st)]
        wb = [self.windows(8, 16, st), self.windows(9, 32, st)]
        a.I("v_lshlrev_b32 v5, 4, v1")
        SB, SG = S_P, S_P + 1
        a.I(f"s_lshr_b32 s{T0}, s{S_Y}, 2", f"s_lshl_b32 s{T0}, s{T0}, 5", f"s_lshl_b32 s{T1}, s{S_X}, 2", f"s_add_u32 s{T0}, s{T0}, s{T1}")
        a.I(f"s_and_b32 s{T1}, s{S_Y}, 3", f"s_add_u32 s{T0}, s{T0}, s{T1}", f"s_mul_i32 s{SB}, s{T0}, 14336")
        a.I(f"s_and_b32 s{T0}, s{S_WAVE}, 1", f"s_mul_i32 s{T0}, s{T0}, 7168", f"s_add_u32 s{SB}, s{SB}, s{T0}")
        a.I(f"s_lshr_b32 s{T0}, s{S_WAVE}, 1", f"s_lshl_b32 s{T0}, s{T0}, 12", f"s_add_u32 s{SB}, s{SB}, s{T0}")
        if AB_WS: a.I(f"s_add_u32 s{SB}, s{SB}, {AB_WS}")
        a.I(f"s_cmp_ge_u32 s{S_Y}, 16", f"s_cselect_b32 s{SG}, 0x80008000, 0")
        if st[0] == 0: self.barrier("C", 0)
        l1, lj = a.newlabel("L_ab1"), a.newlabel("L_abj")
        a.I(f"s_cmp_ge_u32 s{S_WAVE}, 2", f"s_cbranch_scc1 {l1}")
        for eh in range(2):
            nf = 4 - eh
            FA = lambda t, m: 40 + 24 * t + 4 * m
            FB = lambda t, f: 48 + 24 * t + 4 * f
            AC = lambda m, f: 112 + 16 * m + 4 * f

            def reads(s, u, t):
                r = [f"ds_read_b128 {vq(FA(t, m))}, {self.ad(wa[u], s, 2048*m)}" for m in range(2)]
                r += [f"ds_read_b128 {vq(FB(t, f))}, {self.ad(wb[u], s, 8192 + 2048*(4*eh+f))}" for f in range(nf)]
                return r

            def mfmas(t, z, u):
                return [f"{MF} {vq(AC(m, f))}, {vq(FA(t, m))}, {vq(FB(t, f))}, {'0' if z else vq(AC(m, f))}" for f in range(nf) for m in range(2)]
            self.gemm(st, 2, reads, mfmas)
            for f in range(nf):
                q = AC(0, f)
                self.pack(q, q, AC(1, f))
                for d in range(4): a.I(f"v_xor_b32 v{q+d}, s{SG}, v{q+d}")
                a.I(f"buffer_store_dwordx4 {vq(q)}, v5, {srd(R_WK)}, s{SB} offen offset:{1024*f} sc1")
            if eh == 0:
                a.I(f"s_branch {lj}")
                a.L(l1)
        a.L(lj)

    def pos16(self, d):
        a = self.a
        a.I("v_and_b32 v4, 1, v2", "v_mul_u32_u24 v4, 12, v4", "v_xor_b32 v4, v4, v1", f"v_lshlrev_b32 v{d}, 4, v4")

    def c_qkv(self):
        a = self.a
        st = list(range(self.first["qkv"], self.first["qkv"] + 7))
        T0, T1, T2 = S_T0, S_T1, S_T2
        self.rm_base(8, 9)
        a.I(f"s_lshl_b32 s{T0}, s{S_WAVE}, 12")
        a.I(f"v_add_u32 v8, s{T0}, v8", f"v_add_u32 v9, s{T0}, v9")
        wa = [self.windows(8, 10, st), self.windows(9, 13, st)]
        a.I("v_lshrrev_b32 v4, 2, v3", "v_lshl_add_u32 v4, v2, 3, v4", "v_mul_u32_u24 v4, 192, v4")
        a.I("v_and_b32 v6, 1, v2", "v_lshl_add_u32 v4, v6, 3, v4", "v_and_b32 v6, 3, v3", "v_lshl_add_u32 v6, v6, 4, v4")
        wb = self.windows(6, 16, st)
        self.pos16(5)
        a.I(f"v_cmp_eq_u32 s[{S_M}:{S_M+1}], 3, v2")
        SB, SH = S_P, S_P + 3
        a.I(f"s_lshr_b32 s{T0}, s{S_Y}, 1", f"s_mul_i32 s{SH}, s{T0}, 3", f"s_lshl_b32 s{T0}, s{SH}, 7")
        a.I(f"s_and_b32 s{T1}, s{S_Y}, 1", f"s_lshl_b32 s{T2}, s{S_X}, 1", f"s_add_u32 s{T1}, s{T1}, s{T2}", f"s_lshl_b32 s{T1}, s{T1}, 3", f"s_add_u32 s{T0}, s{T0}, s{T1}")
        a.I(f"s_lshl_b32 s{T1}, s{S_WAVE}, 1", f"s_add_u32 s{T0}, s{T0}, s{T1}", f"s_lshl_b32 s{T0}, s{T0}, 10", f"s_add_u32 s{SB}, s{T0}, {QKV_WS}")
        a.I(f"s_add_u32 s{SB+1}, s{SB}, 0x20000", f"s_add_u32 s{SB+2}, s{SB}, 0x40000")
        for hl in range(3):
            a.I(f"s_cmp_ge_u32 s{SH}, {32-hl}", f"s_cselect_b32 s{T0}, 0x3f80, 0", f"v_mov_b32 v{32+hl}, s{T0}")
        a.I("v_mov_b32 v35, 0")
        if st[0] == 0: self.barrier("C", 0)
        FX = lambda t, m: 40 + 32 * t + 4 * m
        FW = lambda t, hl, f: 48 + 32 * t + 8 * hl + 4 * f
        AC = lambda hl, f, m: 112 + 16 * hl + 8 * m + 4 * f

        def reads(s, u, t):
            r = [f"ds_read_b128 {vq(FX(t, m))}, {self.ad(wa[u], s, 2048*m)}" for m in range(2)]
            for hl in range(3):
                for f in range(2):
                    for h2 in range(2):
                        r.append(f"ds_read_b64_tr_b16 {vq(FW(t, hl, f) + 2*h2, 2)}, {self.ad(wb, s, 16384 + 56*hl + 8*f + 768*h2 + 6144*u)}")
            return r

        def mfmas(t, z, u):
            return [f"{MF} {vq(AC(hl, f, m))}, {vq(FW(t, hl, f))}, {vq(FX(t, m))}, {'0' if z else vq(AC(hl, f, m))}"
                    for hl in range(3) for f in range(2) for m in range(2)]
        self.gemm(st, 2, reads, mfmas)
        for hl in range(3):
            for m in range(2):
                q = AC(hl, 0, m)
                self.pack(q, q, AC(hl, 1, m))
                a.I(f"v_cndmask_b32 v{q+2}, v{q+2}, v{32+hl}, s[{S_M}:{S_M+1}]", f"v_cndmask_b32 v{q+3}, v{q+3}, v35, s[{S_M}:{S_M+1}]")
                a.I(f"buffer_store_dwordx4 {vq(q)}, v5, {srd(R_WK)}, s{SB+hl} offen offset:{1024*m} sc1")

    def c_big(self, ph):
        a = self.a
        n = len(self.mk_stages(ph))
        st = list(range(self.first[ph], self.first[ph] + n))
        T0, T1, T2, T3 = S_T0, S_T1, S_T2, S_T3
        if ph == "big1":
            allst = list(range(NSLOT))
            self.rm_base(8, 9)
            a.I(f"s_lshl_b32 s{T0}, s{S_WAVE}, 12")
            a.I(f"v_add_u32 v8, s{T0}, v8", f"v_add_u32 v9, s{T0}, v9", "v_lshlrev_b32 v7, 4, v1")
            self.bw = [self.windows(8, 20, allst), self.windows(9, 23, allst), self.windows(7, 26, allst)]
            if st[0] == 0: self.barrier("C", 0)
        wa0, wa1, wb = self.bw
        wa = [wa0, wa1]
        FT = lambda t, m: 40 + 36 * t + 4 * m
        FE = lambda t, f: 48 + 36 * t + 4 * f
        AC = lambda m, f: 200 + 28 * m + 4 * f

        def reads(s, u, t):
            r = [f"ds_read_b128 {vq(FT(t, m))}, {self.ad(wa[u], s, 2048*m)}" for m in range(2)]
            r += [f"ds_read_b128 {vq(FE(t, f))}, {self.ad(wb, s, 16384 + 7168*u + 1024*f)}" for f in range(7)]
            return r

        def mfmas(t, z, u):
            return [f"{MF} {vq(AC(m, f))}, {vq(FE(t, f))}, {vq(FT(t, m))}, {'0' if z else vq(AC(m, f))}" for f in range(7) for m in range(2)]
        if n:
            self.gemm(st, 2, reads, mfmas, first_c_zero=(ph == "big1"))
        if ph == "big2":
            SB = S_P
            self.ids_big(T0, T1, T2)
            a.I(f"s_lshl_b32 s{T0}, s{T0}, 2", f"s_add_u32 s{T0}, s{T0}, s{T1}", f"s_lshl_b32 s{T0}, s{T0}, 2", f"s_add_u32 s{T0}, s{T0}, s{S_WAVE}")
            a.I(f"s_lshl_b32 s{T0}, s{T0}, 2", f"s_add_u32 s{T0}, s{T0}, s{T2}", f"s_mul_i32 s{SB}, s{T0}, 7168", f"s_add_u32 s{SB}, s{SB}, {PART_WS}")
            a.I(f"s_add_u32 s{SB+1}, s{SB}, 4096")
            lin = wb[0]
            for pc in range(7):
                if pc < 6:
                    m, P = divmod(pc, 3)
                    q = AC(m, 2 * P); self.pack(q, q, AC(m, 2 * P + 1))
                else:
                    q = AC(0, 6); self.pack(q, q, AC(1, 6))
                a.I(f"buffer_store_dwordx4 {vq(q)}, v{lin}, {srd(R_WK)}, s{SB + pc//4} offen offset:{1024*(pc%4)} sc1")

    def c_wo(self):
        a = self.a
        st = list(range(self.first["wo"], self.first["wo"] + 4))
        T0, T1, T2 = S_T0, S_T1, S_T2
        a.I("v_lshrrev_b32 v4, 2, v3", "v_lshl_add_u32 v6, v2, 2, v4", "v_lshlrev_b32 v6, 7, v6")
        a.I("v_and_b32 v4, 2, v4", "v_lshlrev_b32 v4, 1, v4", "v_and_b32 v7, 3, v3", "v_or_b32 v4, v4, v7")
        a.I(f"s_and_b32 s{T0}, s{S_WAVE}, 1", f"s_lshl_b32 s{T0}, s{T0}, 2", f"v_xor_b32 v4, s{T0}, v4", "v_lshl_add_u32 v6, v4, 4, v6")
        a.I("v_cmp_eq_u32 vcc, 3, v2", "v_add_u32 v7, 2048, v6", "v_cndmask_b32 v7, v7, v6, vcc")
        w1, w2 = self.windows(6, 10, st), self.windows(7, 13, st)
        a.I(f"s_lshr_b32 s{T0}, s{S_WAVE}, 1", f"s_lshl_b32 s{T0}, s{T0}, 13", "v_lshlrev_b32 v8, 4, v1", f"v_add_u32 v8, s{T0}, v8")
        wb = self.windows(8, 16, st)
        SB = S_P + 2
        a.I("v_mul_u32_u24 v5, 1792, v3", "v_lshl_add_u32 v5, v2, 4, v5")
        a.I(f"s_and_b32 s{T0}, s{S_Y}, 3", f"s_lshl_b32 s{T1}, s{S_X}, 2", f"s_add_u32 s{T0}, s{T0}, s{T1}", f"s_lshl_b32 s{T0}, s{T0}, 1")
        a.I(f"s_lshr_b32 s{T1}, s{S_WAVE}, 1", f"s_add_u32 s{T0}, s{T0}, s{T1}", f"s_mul_i32 s{SB}, s{T0}, {32*1792}")
        a.I(f"s_lshr_b32 s{T0}, s{S_Y}, 2", f"s_min_u32 s{T0}, s{T0}, 6", f"s_lshl_b32 s{T0}, s{T0}, 1", f"s_and_b32 s{T1}, s{S_WAVE}, 1", f"s_add_u32 s{T0}, s{T0}, s{T1}")
        a.I(f"s_lshl_b32 s{T0}, s{T0}, 6", f"s_add_u32 s{SB}, s{SB}, s{T0}", f"s_add_u32 s{SB+1}, s{SB}, {16*1792}")
        if st[0] == 0: self.barrier("C", 0)
        FW = lambda t, f: 40 + 16 * t + 4 * f
        FO = lambda t, m: 48 + 16 * t + 4 * m
        AC = lambda m, f: 112 + 8 * m + 4 * f

        def reads(s, u, t):
            r = []
            for f in range(2):
                r.append(f"ds_read_b64_tr_b16 {vq(FW(t, f), 2)}, {self.ad(w1, s, 3584*u + 8*f)}")
                r.append(f"ds_read_b64_tr_b16 {vq(FW(t, f) + 2, 2)}, {self.ad(w2, s, 3584*u + 8*f)}")
            r += [f"ds_read_b128 {vq(FO(t, m))}, {self.ad(wb, s, 16384 + 4096*m + 1024*u)}" for m in range(2)]
            return r

        def mfmas(t, z, u):
            return [f"{MF} {vq(AC(m, f))}, {vq(FW(t, f))}, {vq(FO(t, m))}, {'0' if z else vq(AC(m, f))}" for f in range(2) for m in range(2)]
        self.gemm(st, 4, reads, mfmas)
        for m in range(2):
            q = AC(m, 0)
            self.pack(q, q, AC(m, 1))
            a.I(f"buffer_store_dwordx4 {vq(q)}, v5, {srd(R_OUT)}, s{SB+m} offen")

    def attention(self, sK, role):
        a = self.a
        T0, T1, T2, T3 = S_T0, S_T1, S_T2, S_T3
        bK, bV = (sK % NSLOT) * SLOT, ((sK + 1) % NSLOT) * SLOT
        S = lambda n: 112 + 4 * n
        FR = lambda n: 40 + 4 * n
        OA = 184
        VQ = 192
        A0 = 92 if role == "L" else 84
        SW2, SREL, SKB, SC_, SOB = A0, A0 + 1, A0 + 2, A0 + 3, S_T3
        NEG = f32bits(-1e30)

        def bar(bb):
            if bb >= self.N: return
            if role == "L": self.attn_loader_cb(bb)
            else: self.barrier("C", bb)
        self.pos16(10)
        a.I(f"s_lshr_b32 s{SW2}, s{S_WAVE}, 1", f"s_lshl_b32 s{T0}, s{SW2}, 11", f"s_add_u32 s{T1}, s{T0}, {bK}")
        a.I(f"v_add_u32 v11, s{T1}, v10")
        a.I(f"s_lshl_b32 s{T1}, s{S_WAVE}, 10", f"s_add_u32 s{T1}, s{T1}, {bK + 24576}", f"v_add_u32 v12, s{T1}, v10")
        a.I(f"ds_read_b128 {vq(VQ)}, v12")
        for n in range(18):
            a.I(f"ds_read_b128 {vq(FR(n))}, v11 offset:{1024*n}")
        a.I("v_lshrrev_b32 v4, 2, v3", "v_lshl_add_u32 v4, v2, 2, v4", "v_bfe_u32 v13, v3, 1, 1", "v_mul_u32_u24 v14, 28, v13", "v_xor_b32 v4, v4, v14")
        a.I("v_lshlrev_b32 v4, 4, v4", "v_and_b32 v13, 1, v3", "v_lshl_add_u32 v4, v13, 3, v4")
        a.I(f"s_add_u32 s{T1}, s{T0}, {bV}", f"v_add_u32 v13, s{T1}, v4")
        a.I(f"s_lshr_b32 s{T1}, s{S_Y}, 1", f"s_lshl_b32 s{T1}, s{T1}, 3", f"s_lshl_b32 s{T2}, s{SW2}, 1", f"s_add_u32 s{T1}, s{T1}, s{T2}", f"s_sub_u32 s{SKB}, s{T1}, 16")
        a.I(f"s_and_b32 s{T1}, s{S_WAVE}, 1", f"s_lshl_b32 s{T1}, s{T1}, 4", f"s_add_u32 s{SREL}, s{T1}, 256")
        a.I("v_lshlrev_b32 v4, 2, v2", "v_sub_u32 v14, v3, v4", f"v_mov_b32 v15, {hex(NEG)}", "v_mov_b32 v16, 0", "v_mov_b32 v17, 256")
        for n in range(18):
            if n in (0, 1, 16, 17):
                a.I(f"s_sub_u32 s{T1}, s{SREL}, {16*n}")
                if n < 2:
                    a.I(f"s_cmp_lt_i32 s{SKB}, {-n}", f"s_cselect_b32 s{T1}, 0x10000, s{T1}")
                a.I(f"v_add_u32 v4, s{T1}, v14")
                for r in range(4):
                    a.I(f"v_subrev_u32 v5, {r}, v4" if r else "v_mov_b32 v5, v4")
                    a.I(f"v_cmp_gt_u32 vcc, v17, v5", f"v_cndmask_b32 v{S(n)+r}, v15, v16, vcc")
            else:
                a.I(f"s_cmp_lt_i32 s{SKB}, {-n}", f"s_cselect_b32 s{T1}, {hex(NEG)}, 0")
                for r in range(4): a.I(f"v_mov_b32 v{S(n)+r}, s{T1}")
        a.I("s_waitcnt lgkmcnt(0)")
        bar(sK + 1)
        for n in range(18):
            a.I(f"{MF} {vq(S(n))}, {vq(FR(n))}, {vq(VQ)}, {vq(S(n))}")
        vreads = []
        for T in range(9):
            for dt in range(2):
                for h2 in range(2):
                    vreads.append(f"ds_read_b64_tr_b16 {vq(FR(2*T+dt) + 2*h2, 2)}, v13 offset:{1024*(2*T+h2) + 512*dt}")
        vi = 0
        M = 18
        regs = [S(n) + r for n in range(18) for r in range(4)]
        a.I(vreads[0]); a.I(vreads[1]); vi = 2
        a.I(f"v_max3_f32 v{M}, v{regs[0]}, v{regs[1]}, v{regs[2]}")
        a.I(f"v_max3_f32 v{M+1}, v{regs[3]}, v{regs[4]}, v{regs[5]}")
        k = 6; t = 0
        while k < 72:
            a.I(f"v_max3_f32 v{M+t}, v{M+t}, v{regs[k]}, v{regs[k+1]}")
            k += 2; t ^= 1
            if vi < len(vreads): a.I(vreads[vi]); vi += 1
        while vi < len(vreads): a.I(vreads[vi]); vi += 1
        a.I(f"v_max_f32 v{M}, v{M}, v{M+1}")
        a.I(f"v_mov_b32 v{M+1}, v{M}", f"v_permlane16_swap_b32 v{M}, v{M+1}", f"v_max_f32 v{M}, v{M}, v{M+1}")
        a.I(f"v_mov_b32 v{M+1}, v{M}", f"v_permlane32_swap_b32 v{M}, v{M+1}", f"v_max_f32 v{M}, v{M}, v{M+1}")
        c = math.log2(math.e) / math.sqrt(28.0)
        a.I(f"s_mov_b32 s{SC_}, {hex(f32bits(c))}")
        a.I(f"v_mul_f32 v{M}, s{SC_}, v{M}")
        a.I("s_waitcnt lgkmcnt(0)")
        bar(sK + 2)
        pend = []
        for T in range(9):
            rr = [S(2 * T) + r for r in range(8)]
            for x in rr: a.I(f"v_fma_f32 v{x}, v{x}, s{SC_}, -v{M}")
            for m in pend: a.I(m)
            for x in rr: a.I(f"v_exp_f32 v{x}, v{x}")
            self.pack(S(2 * T), S(2 * T), S(2 * T + 1))
            pend = [f"{MF} {vq(OA + 4*dt)}, {vq(FR(2*T+dt))}, {vq(S(2*T))}, {'0' if T == 0 else vq(OA + 4*dt)}" for dt in range(2)]
        for m in pend: a.I(m)
        a.I(f"s_lshr_b32 s{T1}, s{S_Y}, 1", f"s_lshl_b32 s{T1}, s{T1}, 3", f"s_add_u32 s{T1}, s{T1}, s{S_WAVE}", f"s_lshl_b32 s{T1}, s{T1}, 4")
        a.I(f"s_and_b32 s{T2}, s{S_Y}, 1", f"s_add_u32 s{T1}, s{T1}, s{T2}", f"s_lshl_b32 s{T2}, s{S_X}, 1", f"s_add_u32 s{T1}, s{T1}, s{T2}")
        a.I(f"s_lshl_b32 s{T1}, s{T1}, 10", f"s_add_u32 s{SOB}, s{T1}, {O_WS}")
        a.I("v_lshlrev_b32 v10, 4, v1", "v_cmp_eq_u32 vcc, 3, v2")
        a.I(f"v_mov_b32 v{M}, v{OA+4}", f"v_mov_b32 v{M+1}, v{OA+4}", f"v_permlane32_swap_b32 v{M}, v{M+1}")
        a.I(f"v_mov_b32 v{M}, v{M+1}", f"v_permlane16_swap_b32 v{M}, v{M+1}", f"v_rcp_f32 v{M}, v{M+1}")
        for r in range(8): a.I(f"v_mul_f32 v{OA+r}, v{OA+r}, v{M}")
        self.pack(OA, OA, OA + 4)
        a.I(f"v_cndmask_b32 v{OA+2}, v{OA+2}, v16, vcc", f"v_cndmask_b32 v{OA+3}, v{OA+3}, v16, vcc")
        a.I(f"buffer_store_dwordx4 {vq(OA)}, v10, {srd(R_WK)}, s{SOB} offen sc1")
        if role == "L": self.fifo.append(("ost", 0))

    def only_wave(self, w, fn):
        a = self.a
        sk = a.newlabel("L_ow")
        a.I(f"s_cmp_eq_u32 s{S_WAVE}, {w}", f"s_cbranch_scc0 {sk}")
        fn()
        a.L(sk)

    def spin(self, vdst, ldtext, cmptext):
        a = self.a
        top, ok = a.newlabel("L_sp"), a.newlabel("L_ok")
        a.I(f"s_mov_b32 s{S_SPIN}, 0")
        a.L(top)
        a.I("s_waitcnt vmcnt(0)", cmptext, f"s_cbranch_vccz {ok}")
        a.I(f"s_add_u32 s{S_SPIN}, s{S_SPIN}, 1", f"s_cmp_ge_u32 s{S_SPIN}, 0x40000", f"s_cbranch_scc1 {ok}")
        a.I(ldtext, f"s_branch {top}")
        a.L(ok)

    def flag_store(self, f):
        a = self.a
        a.I(f"s_lshl_b32 s{S_T0}, s2, 7", f"s_add_u32 s{S_T0}, s{S_T0}, {FLAG_WS + f*32768}")
        a.I(f"v_mov_b32 v36, s{S_NONCE}", "v_mov_b32 v37, 0", "s_mov_b64 exec, 1")
        a.I(f"buffer_store_dword v36, v37, {srd(R_WK)}, s{S_T0} offen sc1")
        a.I("s_mov_b64 exec, -1")

    def dep_addr(self, dep, v):
        a = self.a
        T0, T1, T2, T3 = S_T0, S_T1, S_T2, S_T3
        if dep == "ab":
            self.ids_big(T0, T1, T2)
            a.I(f"s_lshr_b32 s{T0}, s{T2}, 1", f"s_lshl_b32 s{T0}, s{T0}, 2", f"s_add_u32 s{T0}, s{T0}, s{T1}", f"s_lshl_b32 s{T0}, s{T0}, 5")
            a.I(f"s_and_b32 s{T2}, s{T2}, 1", f"s_lshl_b32 s{T2}, s{T2}, 2", f"s_add_u32 s{T0}, s{T0}, s{T2}")
            a.I(f"v_lshrrev_b32 v4, 2, v3", f"v_and_b32 v{v}, 3, v3", f"v_lshl_add_u32 v{v}, v{v}, 3, v4", f"v_add_u32 v{v}, s{T0}, v{v}")
            f = F_AB
        elif dep == "qkv":
            a.I(f"s_and_b32 s{T0}, s{S_Y}, 1", f"s_lshl_b32 s{T1}, s{S_X}, 1", f"s_add_u32 s{T0}, s{T0}, s{T1}", f"s_lshr_b32 s{T1}, s{S_Y}, 1")
            a.I("v_lshrrev_b32 v4, 2, v3", "v_min_u32 v4, 2, v4", f"v_lshl_add_u32 v4, v4, 4, s{T0}", "v_mul_u32_u24 v4, 0x5556, v4", "v_lshrrev_b32 v4, 16, v4")
            a.I(f"v_and_b32 v{v}, 3, v3", f"v_min_u32 v{v}, 2, v{v}", f"v_cmp_gt_u32 vcc, 4, v3", f"v_cndmask_b32 v{v}, v{v}, v37, vcc")
            a.I(f"v_sub_u32 v{v}, s{T1}, v{v}", f"v_max_i32 v{v}, 0, v{v}")
            a.I(f"v_and_b32 v39, 1, v{v}", "v_lshl_add_u32 v4, v4, 1, v39", f"v_lshrrev_b32 v{v}, 1, v{v}", f"v_lshl_add_u32 v{v}, v4, 3, v{v}")
            f = F_QKV
        elif dep == "attn":
            a.I(f"s_and_b32 s{T0}, s{S_Y}, 3", f"s_lshl_b32 s{T1}, s{S_X}, 2", f"s_add_u32 s{T0}, s{T0}, s{T1}", f"s_lshr_b32 s{T0}, s{T0}, 1", f"s_lshl_b32 s{T0}, s{T0}, 4")
            a.I(f"v_and_b32 v4, 1, v3", f"v_lshrrev_b32 v{v}, 1, v3", f"v_lshl_add_u32 v{v}, v4, 3, v{v}", f"v_add_u32 v{v}, s{T0}, v{v}")
            f = F_O
        elif dep == "part":
            a.I(f"s_and_b32 s{T0}, s{S_X}, 1", f"s_lshl_b32 s{T1}, s{S_Y}, 3", f"s_add_u32 s{T0}, s{T0}, s{T1}")
            a.I(f"v_and_b32 v{v}, 3, v3", f"v_lshl_add_u32 v{v}, v{v}, 1, s{T0}")
            f = F_PART
        a.I(f"v_lshlrev_b32 v{v}, 7, v{v}", f"v_add_u32 v{v}, {FLAG_WS + f*32768}, v{v}")

    def plan_sync(self):
        o = self.opt
        a = self.a
        F = self.first
        last = lambda ph: F[ph] + len(self.mk_stages(ph)) - 1
        used = False

        def publish(f, b, loaders=False):
            assert b < self.N, (f, b)
            self.hook(self.pre, "C", b, lambda: a.I("s_waitcnt vmcnt(0)"))
            if loaders:
                self.hook(self.pre, "L", b, lambda: self.wait_fifo(lambda e: e[0] == "ost"))
            self.hook(self.post, "C", b, lambda: self.only_wave(0, lambda: self.flag_store(f)))

        def consume(dep, b_issue, b_ok):
            ld = f"buffer_load_dword v38, v39, {srd(R_WK)}, 0 offen sc1"

            def iss():
                a.I("v_mov_b32 v37, 0")
                self.dep_addr(dep, 38)
                a.I("v_mov_b32 v39, v38")
                a.I(ld)
            self.hook(self.post, "C", b_issue, lambda: self.only_wave(0, iss))
            self.hook(self.pre, "C", b_ok, lambda: self.only_wave(0, lambda: self.spin(38, ld, f"v_cmp_ne_u32 vcc, s{S_NONCE}, v38")))
            for st in self.stages:
                for g in st.groups:
                    if g.dep == dep: g.issue_at = b_ok
        if self.has("ab") and self.has("big1"):
            used = True
            publish(F_AB, last("ab") + 1 + o.pub_ab)
            consume("ab", F["big1"] - o.lead_ab - 1, F["big1"] - o.lead_ab)
        if self.has("qkv") and self.has("attn"):
            used = True
            publish(F_QKV, last("qkv") + 1 + o.pub_qkv)
            consume("qkv", F["attn"] - o.lead_qkv - 1, F["attn"] - o.lead_qkv)
        if self.has("attn") and self.has("wo"):
            used = True
            publish(F_O, last("attn") + 1 + o.pub_o, loaders=True)
            consume("attn", F["wo"] - o.lead_o - 1, F["wo"] - o.lead_o)
        if self.has("big2") and self.has("reduce"):
            used = True
            publish(F_PART, last("big2") + 1 + o.pub_part)
        self.sync = used
        if used:
            ld = f"buffer_load_dword v38, v37, {srd(R_DBG)}, 0 offen sc1"

            def n_iss():
                a.I("v_mov_b32 v37, 0", ld)

            def n_chk():
                self.spin(38, ld, "v_cmp_eq_u32 vcc, 0, v38")
                a.I(f"v_readfirstlane_b32 s{S_NONCE}, v38")
            self.pre.setdefault(("C", 3), []).insert(0, lambda: self.only_wave(0, n_chk))
            self.post.setdefault(("C", 2), []).insert(0, lambda: self.only_wave(0, n_iss))

    def reduce(self):
        a = self.a
        T0, T1, T2, T3 = S_T0, S_T1, S_T2, S_T3
        if self.sync and self.has("big2"):
            ldn = f"buffer_load_dword v36, v37, {srd(R_DBG)}, 0 offen sc1"
            ld = f"buffer_load_dword v38, v39, {srd(R_WK)}, 0 offen sc1"
            a.I("v_mov_b32 v37, 0", ldn)
            self.dep_addr("part", 39)
            a.I(ld)
            self.spin(38, ld, "v_cmp_ne_u32 vcc, v36, v38")
        SB, SO = S_P, S_P + 1
        self.ids_big(T0, T1, T2)
        a.I(f"s_lshl_b32 s{T3}, s{T0}, 2", f"s_add_u32 s{T3}, s{T3}, s{T2}", f"s_mul_i32 s{SO}, s{T3}, {32*1792}")
        a.I(f"s_mul_i32 s{T3}, s{T1}, 224", f"s_add_u32 s{SO}, s{SO}, s{T3}", f"s_add_u32 s{SO}, s{SO}, 896")
        a.I(f"s_lshl_b32 s{T0}, s{T0}, 2", f"s_add_u32 s{T0}, s{T0}, s{T1}", f"s_lshl_b32 s{T0}, s{T0}, 2", f"s_add_u32 s{T0}, s{T0}, s{T2}")
        a.I(f"s_mul_i32 s{SB}, s{T0}, {4*7168}", f"s_add_u32 s{SB}, s{SB}, {PART_WS}")
        a.I(f"s_lshl_b32 s{T0}, s{S_LW}, 10", f"s_add_u32 s{SB}, s{SB}, s{T0}")
        a.I("v_lshlrev_b32 v10, 4, v1")
        for h in range(2):
            for k in range(4):
                a.I(f"s_add_u32 s{T0}, s{SB}, {7168*k + 4096*h}")
                a.I(f"buffer_load_dwordx4 {vq(40 + 16*h + 4*k)}, v10, {srd(R_WK)}, s{T0} offen sc1")
        a.I("v_mul_u32_u24 v11, 1792, v3", "v_lshl_add_u32 v12, v2, 3, v11", "v_lshl_add_u32 v11, v2, 4, v11")
        a.I("s_mov_b32 s90, 0xffff0000")
        for h in range(2):
            a.I(f"s_waitcnt vmcnt({4 - 4*h + (0 if h == 0 else 1)})")
            base = 40 + 16 * h
            acc = 80 + 8 * h
            for d in range(4):
                a.I(f"v_lshlrev_b32 v{acc+2*d}, 16, v{base+d}", f"v_and_b32 v{acc+2*d+1}, s90, v{base+d}")
            for k in range(1, 4):
                for d in range(4):
                    a.I(f"v_lshlrev_b32 v100, 16, v{base+4*k+d}", f"v_and_b32 v101, s90, v{base+4*k+d}")
                    a.I(f"v_add_f32 v{acc+2*d}, v{acc+2*d}, v100", f"v_add_f32 v{acc+2*d+1}, v{acc+2*d+1}, v101")
            self.pack(acc, acc, acc + 4)
            if h == 0:
                a.I(f"s_lshl_b32 s{T0}, s{S_LW}, 6", f"s_cmp_eq_u32 s{S_LW}, 3", f"s_cselect_b32 s{T0}, {16*1792}, s{T0}", f"s_add_u32 s{T0}, s{T0}, s{SO}")
                a.I(f"buffer_store_dwordx4 {vq(acc)}, v11, {srd(R_OUT)}, s{T0} offen")
            else:
                l6, le = a.newlabel("L_r6"), a.newlabel("L_re")
                a.I(f"s_cmp_ge_u32 s{S_LW}, 2", f"s_cbranch_scc1 {l6}")
                a.I(f"s_lshl_b32 s{T0}, s{S_LW}, 6", f"s_add_u32 s{T0}, s{T0}, {16*1792 + 64}", f"s_add_u32 s{T0}, s{T0}, s{SO}")
                a.I(f"buffer_store_dwordx4 {vq(acc)}, v11, {srd(R_OUT)}, s{T0} offen")
                a.I(f"s_branch {le}")
                a.L(l6)
                a.I(f"s_cmp_eq_u32 s{S_LW}, 2", f"s_cbranch_scc0 {le}")
                a.I(f"s_add_u32 s{T0}, s{SO}, 192", f"s_add_u32 s{T1}, s{SO}, {16*1792 + 192}")
                a.I(f"buffer_store_dwordx2 {vq(acc, 2)}, v12, {srd(R_OUT)}, s{T0} offen")
                a.I(f"buffer_store_dwordx2 {vq(acc+2, 2)}, v12, {srd(R_OUT)}, s{T1} offen")
                a.L(le)

    def build(self):
        a = self.a
        self.plan_sync()
        self.prologue()
        lload = a.newlabel("L_loader")
        a.I(f"s_cmp_ge_u32 s{S_WAVE}, 4", f"s_cbranch_scc1 {lload}")
        self.srds()
        if self.opt.warm:
            def warm():
                here = a.newlabel("L_pc")
                a.I("s_getpc_b64 s[88:89]")
                a.L(here)
                a.I("s_and_b32 s89, s89, 0xffff", f"s_mov_b32 s90, {self.end}-{here}", "s_mov_b32 s91, 0x20000")
                a.I("v_lshlrev_b32 v4, 7, v1")
                for i in range(0, self.opt.warm, 8192):
                    a.I(f"s_mov_b32 s{S_T0}, {i}", f"buffer_load_dword v196, v4, s[88:91], s{S_T0} offen")
            self.only_wave(2, warm)
        if self.sync:
            def wr_nonce():
                sk = a.newlabel("L_nn")
                a.I("s_cmp_eq_u32 s2, 0", f"s_cbranch_scc0 {sk}")
                a.I("s_memrealtime s[92:93]", "s_waitcnt lgkmcnt(0)", "s_or_b32 s92, s92, 1")
                a.I("v_mov_b32 v4, s92", "v_mov_b32 v5, 0", "s_mov_b64 exec, 1")
                a.I(f"buffer_store_dword v4, v5, {srd(R_DBG)}, 0 offen sc1")
                a.I("s_mov_b64 exec, -1")
                a.L(sk)
            self.only_wave(1, wr_nonce)
        for k, ph in enumerate(self.phases):
            if ph == "ab": self.c_ab()
            elif ph == "qkv": self.c_qkv()
            elif ph in ("big1", "big2"): self.c_big(ph)
            elif ph == "attn":
                if self.first[ph] == 0: self.barrier("C", 0)
                self.attention(self.first[ph], role="C")
            elif ph == "wo": self.c_wo()
            self.stamp(k, wave=3)
        self.fine_dump()
        a.I(f"s_branch {self.end}")
        a.L(lload)
        self.loader()
        a.L(self.end)
        a.I("s_endpgm")
        return a.render()

    def descriptor(self):
        return f""".amdhsa_kernel {self.name}
  .amdhsa_next_free_vgpr 256
  .amdhsa_next_free_sgpr 102
  .amdhsa_accum_offset 256
  .amdhsa_group_segment_fixed_size 0
  .amdhsa_kernarg_size 88
  .amdhsa_user_sgpr_count 2
  .amdhsa_user_sgpr_kernarg_segment_ptr 1
  .amdhsa_system_sgpr_workgroup_id_x 1
.end_amdhsa_kernel
"""


def main():
    ap = argparse.ArgumentParser()
    ap.add_argument("out")
    ap.add_argument("--split", default="ab,qkv,big1,attn,big2,wo,reduce", help="kernels separated by / ; phases by ,")
    ap.add_argument("--n1", type=int, default=10)
    ap.add_argument("--pub_ab", type=int, default=2)
    ap.add_argument("--pub_qkv", type=int, default=3)
    ap.add_argument("--pub_o", type=int, default=2)
    ap.add_argument("--pub_part", type=int, default=3)
    ap.add_argument("--lead_ab", type=int, default=1)
    ap.add_argument("--lead_qkv", type=int, default=3)
    ap.add_argument("--lead_o", type=int, default=1)
    ap.add_argument("--warm", type=int, default=32768)
    ap.add_argument("--stamps", action="store_true")
    ap.add_argument("--fine", action="store_true")
    ap.add_argument("--dbgspan", action="store_true")
    opt = ap.parse_args()
    kernels = [k.split(",") for k in opt.split.split("/")]
    hdr = open(f"cdna_kernels/{NAME}.s.ref").read().split("; Override launch")[0]
    lds = SLOT * NSLOT
    body = []; desc = []; launches = []
    lab = 0
    for i, ph in enumerate(kernels):
        nm = f"{NAME}_kernel" if len(kernels) == 1 else f"part{i}_kernel"
        opt.kidx = i
        k = Kernel(nm, ph, opt)
        k.a.nlab = lab
        body.append(k.build()); desc.append(k.descriptor())
        lab = k.a.nlab
        if len(kernels) == 1:
            launches.append(f"; @launch grid=(256,1,1) block=(512,1,1) lds={lds}")
        else:
            launches.append(f"; @launch kernel={nm} grid=(256,1,1) block=(512,1,1) lds={lds}")
    txt = hdr + "\n".join(launches) + '\n.amdgcn_target "amdgcn-amd-amdhsa--gfx950"\n.text\n' + "".join(body)
    txt += '.section .rodata,"a"\n' + "".join(".p2align 6\n" + d for d in desc)
    open(opt.out, "w").write(txt)


if __name__ == "__main__":
    main()
```
